```python
import torch

def _softmax(x, axis=-1):
    return torch.softmax(x, dim=axis)
def _gelu(x):
    return torch.nn.functional.gelu(x, approximate="tanh")
def _silu(x):
    return torch.nn.functional.silu(x)
def _sigmoid(x):
    return torch.sigmoid(x)
def _layernorm(x, axis=-1, eps=1e-5):
    m = x.mean(dim=axis, keepdim=True)
    v = x.var(dim=axis, keepdim=True, unbiased=False)
    return (x - m) / torch.sqrt(v + eps)
def _scatter_add(tgt, idx, src, axis=0):
    return tgt.clone().index_add_(axis, idx, src)
def _segment_sum(src, seg, n):
    out = torch.zeros((n,) + src.shape[1:], dtype=src.dtype)
    return out.index_add_(0, seg, src)
def _pad(x, pw):
    flat = tuple(v for pair in reversed(pw) for v in pair)
    return torch.nn.functional.pad(x, flat)

kernel_name = 'gated_mix__linear_kernel_hedgehog__geglu_ffn__prompt'

def setup_inputs():

    _w = (lambda a: (lambda t: t.to(torch.bfloat16) if t.is_floating_point() else t)(torch.as_tensor(a)))
    def _A_setup():
        B, S, D, H = 1, 2048, 640, 32
        Dh = D // H
        return {
            "x": _w((lambda *s: torch.randn(*s, dtype=torch.bfloat16) * 0.05)(B, S, D)),
            "wqkv": _w((lambda *s: torch.randn(*s, dtype=torch.bfloat16) * 0.8)(D, 3 * D)),
            "w_phi": _w((lambda *s: torch.randn(*s, dtype=torch.bfloat16) * 0.8)(H, Dh, Dh) * (Dh ** -0.5)),
            "wo": _w((lambda *s: torch.randn(*s, dtype=torch.bfloat16) * 0.05)(D, D)),
        }
    _A_in = _A_setup()

    def _B_setup():
        B, S, D, F = 1, 2048, 640, 1728
        return {
            "x": _w((lambda *s: torch.randn(*s, dtype=torch.bfloat16) * 0.05)(B, S, D)),
            "w_gate": _w((lambda *s: torch.randn(*s, dtype=torch.bfloat16) * 0.05)(D, F)),
            "w_up": _w((lambda *s: torch.randn(*s, dtype=torch.bfloat16) * 0.05)(D, F)),
            "w_down": _w((lambda *s: torch.randn(*s, dtype=torch.bfloat16) * 0.05)(F, D)),
        }
    _B_in = _B_setup()

    return {
        "A_x": _A_in["x"],
        "A_wqkv": _A_in["wqkv"],
        "A_w_phi": _A_in["w_phi"],
        "A_wo": _A_in["wo"],
        "B_x": _B_in["x"],
        "B_w_gate": _B_in["w_gate"],
        "B_w_up": _B_in["w_up"],
        "B_w_down": _B_in["w_down"],
        "gate_w": _w((lambda *s: torch.randn(*s, dtype=torch.bfloat16) * 0.05)(640) * 16.0),
    }

def reference(A_x, A_wqkv, A_w_phi, A_wo, B_x, B_w_gate, B_w_up, B_w_down, gate_w):
    def _A_ref(x, wqkv, w_phi, wo):
        B, S, D = x.shape
        H = 32; Dh = D // H
        qkv = (lambda x, *d: x.permute(*d))((x @ wqkv).reshape(B, S, 3, H, Dh), 2, 0, 3, 1, 4)
        q, k, v = qkv[0], qkv[1], qkv[2]
        pq = torch.einsum("bhsd,hdf->bhsf", q, w_phi)
        pk = torch.einsum("bhsd,hdf->bhsf", k, w_phi)
        phi_q = torch.concatenate([_softmax(pq, axis=-1), _softmax(-pq, axis=-1)], axis=-1)
        phi_k = torch.concatenate([_softmax(pk, axis=-1), _softmax(-pk, axis=-1)], axis=-1)
        kv = torch.einsum("bhsf,bhsd->bhfd", phi_k, v)
        z  = torch.einsum("bhsf->bhf", phi_k)
        num = torch.einsum("bhqf,bhfd->bhqd", phi_q, kv)
        den = torch.einsum("bhqf,bhf->bhq", phi_q, z)[..., None] + 1e-6
        o = num / den
        return (lambda x, *d: x.permute(*d))(o, 0, 2, 1, 3).reshape(B, S, D) @ wo

    def _B_ref(x, w_gate, w_up, w_down):
        return (_gelu(x @ w_gate) * (x @ w_up)) @ w_down

    x = A_x
    g = _sigmoid((x * gate_w).sum(-1, keepdims=True))
    a = _A_ref(x, A_wqkv, A_w_phi, A_wo)
    b = _B_ref(x, B_w_gate, B_w_up, B_w_down)
    return g * a + (1 - g) * b
```

```python
import re

TRANS = {'v_exp_f32', 'v_log_f32', 'v_rcp_f32', 'v_rsq_f32', 'v_sqrt_f32', 'v_sin_f32', 'v_cos_f32',
         'v_rcp_iflag_f32'}

_reg_re = re.compile(r'^(-|abs\()?\|?([vas])(\d+)\)?\|?$')
_rng_re = re.compile(r'^(-)?([vas])\[(\d+):(\d+)\]$')


def regs_of(op):
    op = op.strip()
    m = _rng_re.match(op)
    if m:
        return [(m.group(2), i) for i in range(int(m.group(3)), int(m.group(4)) + 1)]
    m = _reg_re.match(op)
    if m:
        return [(m.group(2), int(m.group(3)))]
    if op in ('vcc', 'exec', 'm0', 'scc'):
        return [(op, 0)]
    if op in ('vcc_lo', 'vcc_hi'):
        return [('vcc', 0)]
    return []


def split_ops(s):
    out, depth, cur = [], 0, ''
    for ch in s:
        if ch == '[' or ch == '(':
            depth += 1
        elif ch == ']' or ch == ')':
            depth -= 1
        if ch == ',' and depth == 0:
            out.append(cur.strip())
            cur = ''
        else:
            cur += ch
    if cur.strip():
        out.append(cur.strip())
    return out


class Ins:
    __slots__ = ('mn', 'cls', 'w', 'r', 'srcc', 'states', 'text', 'wide_store_data', 'lds_dma', 'dpp', 'ab')


def classify(text):
    t = text.split(';')[0].strip()
    parts = t.split(None, 1)
    mn = parts[0]
    rest = parts[1] if len(parts) > 1 else ''
    ops_raw = split_ops(rest)
    mods = []
    if ops_raw:
        last = ops_raw[-1].split()
        ops_raw[-1] = last[0]
        mods = last[1:]
    I = Ins()
    I.mn = mn
    I.text = text
    I.states = 1
    I.srcc = []
    I.ab = []
    I.wide_store_data = []
    I.lds_dma = False
    I.dpp = any(m.startswith(('quad_perm', 'row_', 'wave_')) for m in mods) or mn.endswith('_dpp')
    w, r = [], []
    if mn == 's_nop':
        I.cls = 'nop'
        I.states = int(ops_raw[0], 0) + 1
    elif mn.startswith('v_mfma'):
        I.cls = 'mfma'
        w = regs_of(ops_raw[0])
        I.ab = regs_of(ops_raw[1]) + regs_of(ops_raw[2])
        I.srcc = regs_of(ops_raw[3])
        r = I.ab + I.srcc
    elif mn.startswith('v_'):
        I.cls = 'valu'
        if mn.startswith('v_cmp'):
            w = regs_of(ops_raw[0])
            for o in ops_raw[1:]:
                r += regs_of(o)
        elif mn in ('v_add_co_u32', 'v_addc_co_u32', 'v_sub_co_u32', 'v_subb_co_u32', 'v_mad_u64_u32'):
            w = regs_of(ops_raw[0]) + regs_of(ops_raw[1])
            for o in ops_raw[2:]:
                r += regs_of(o)
        elif mn.startswith('v_permlane') and 'swap' in mn:
            w = regs_of(ops_raw[0]) + regs_of(ops_raw[1])
            r = list(w)
        else:
            w = regs_of(ops_raw[0])
            for o in ops_raw[1:]:
                r += regs_of(o)
            if mn.startswith(('v_fmac', 'v_pk_fmac', 'v_dot2c', 'v_writelane')):
                r += w
            if mn == 'v_cndmask_b32' and len(ops_raw) == 3:
                r += [('vcc', 0)]
    elif mn.startswith(('buffer_load', 'global_load')):
        if 'lds' in mods or mn.startswith('global_load_lds'):
            I.cls = 'vmem'
            I.lds_dma = True
            for o in ops_raw:
                r += regs_of(o)
            r += [('m0', 0)]
        else:
            I.cls = 'vmem'
            w = regs_of(ops_raw[0])
            for o in ops_raw[1:]:
                r += regs_of(o)
    elif mn.startswith(('buffer_store', 'global_store', 'buffer_atomic', 'global_atomic')):
        I.cls = 'vmem'
        for o in ops_raw:
            r += regs_of(o)
        if mn.endswith(('x3', 'x4')):
            di = 0 if mn.startswith('buffer') else 1
            I.wide_store_data = regs_of(ops_raw[di])
        if 'atomic' in mn and 'sc0' in mods:
            w = regs_of(ops_raw[0])
    elif mn.startswith('ds_read') or mn.startswith('ds_bpermute') or mn.startswith('ds_permute') or mn.startswith('ds_swizzle'):
        I.cls = 'ds'
        w = regs_of(ops_raw[0])
        for o in ops_raw[1:]:
            r += regs_of(o)
    elif mn.startswith('ds_'):
        I.cls = 'ds'
        for o in ops_raw:
            r += regs_of(o)
    elif mn.startswith(('s_load', 's_buffer_load', 's_memtime', 's_memrealtime')):
        I.cls = 'smem'
        w = regs_of(ops_raw[0])
        for o in ops_raw[1:]:
            r += regs_of(o)
    elif mn.startswith('s_'):
        I.cls = 'salu'
        if mn.startswith(('s_cmp', 's_waitcnt', 's_barrier', 's_branch', 's_cbranch', 's_endpgm', 's_sleep',
                          's_setprio', 's_bitcmp')):
            for o in ops_raw:
                r += regs_of(o)
        else:
            w = regs_of(ops_raw[0])
            for o in ops_raw[1:]:
                r += regs_of(o)
    else:
        raise ValueError('unknown instr: ' + text)
    I.w = set(w)
    I.r = set(r)
    I.srcc = set(I.srcc)
    I.ab = set(I.ab)
    I.wide_store_data = set(I.wide_store_data)
    return I


def need_states(P, C):
    n = 0
    vw = {x for x in P.w if x[0] in 'va'}
    sw = {x for x in P.w if x[0] == 's' or x[0] == 'vcc'}
    if P.cls == 'valu':
        if C.cls == 'mfma' and (vw & C.r):
            n = max(n, 2)
        if P.mn in TRANS and C.cls == 'valu' and C.mn not in TRANS and (vw & C.r):
            n = max(n, 1)
        if P.mn in TRANS and C.cls in ('vmem', 'ds') and (vw & C.r):
            n = max(n, 1)
        if sw:
            if C.cls == 'valu' and (sw & C.r):
                n = max(n, 4 if C.mn.startswith(('v_readlane', 'v_writelane')) else 2)
            if C.cls == 'vmem' and (sw & C.r):
                n = max(n, 5)
            if C.cls in ('salu', 'smem') and (sw & C.r):
                n = max(n, 1)
        if C.cls == 'valu' and C.mn.startswith(('v_readfirstlane', 'v_readlane')) and (vw & C.r):
            n = max(n, 1)
        if C.cls == 'valu' and (C.dpp or C.mn.startswith('v_permlane')) and (vw & C.r):
            n = max(n, 2)
    if P.cls == 'mfma':
        passes8 = '32x32' in P.mn
        if C.cls == 'mfma':
            if vw & C.ab:
                n = max(n, 12 if passes8 else 8)
            if vw & C.srcc:
                if P.w == C.srcc and P.mn == C.mn:
                    pass
                else:
                    n = max(n, 10 if passes8 else 6)
            elif vw & C.w:
                n = max(n, 10 if passes8 else 6)
        elif C.cls in ('valu', 'vmem', 'ds'):
            if vw & (C.r | C.w):
                n = max(n, 12 if passes8 else 8)
            if C.cls == 'valu' and (P.srcc & C.w):
                n = max(n, 7 if passes8 else 3)
    if P.cls == 'salu' and ('m0', 0) in P.w and C.lds_dma:
        n = max(n, 1)
    if P.wide_store_data and (P.wide_store_data & C.w):
        n = max(n, 2)
    return n


class Asm:
    def __init__(self):
        self.lines = []
        self.hist = []
        self.vmq = []
        self.lgq = []
        self.nops = 0
        self.count = 0

    def raw(self, text):
        self.lines.append(text)

    def comment(self, text):
        self.lines.append('    ; ' + text)

    def label(self, name):
        self.lines.append(name + ':')

    def fence(self):
        self.i('s_nop 7')
        self.i('s_nop 3')
        self.hist = []

    def i(self, text, tag=None):
        I = classify(text)
        dist = 0
        need = 0
        for P in reversed(self.hist):
            n = need_states(P, I)
            if n > dist:
                need = max(need, n - dist)
            dist += P.states
            if dist >= 20:
                break
        while need > 0:
            k = min(need, 16)
            N = classify('s_nop %d' % (k - 1))
            self.lines.append('    s_nop %d' % (k - 1))
            self.hist.append(N)
            self.nops += 1
            need -= k
        self.lines.append('    ' + text)
        self.hist.append(I)
        if len(self.hist) > 64:
            self.hist = self.hist[-32:]
        self.count += 1
        if I.cls == 'vmem':
            self.vmq.append(tag)
        elif I.cls == 'ds':
            self.lgq.append(tag)
        return I

    def wait_vm(self, tag):
        tags = tag if isinstance(tag, (list, set)) else [tag]
        idx = -1
        for k, t in enumerate(self.vmq):
            if t in tags:
                idx = k
        if idx < 0:
            return
        n = len(self.vmq) - 1 - idx
        if n > 63:
            n = 63
            idx = len(self.vmq) - 1 - 63
        self.i('s_waitcnt vmcnt(%d)' % n)
        self.vmq = self.vmq[idx + 1:]

    def wait_lg(self, tag):
        tags = tag if isinstance(tag, (list, set)) else [tag]
        idx = -1
        for k, t in enumerate(self.lgq):
            if t in tags:
                idx = k
        if idx < 0:
            return
        n = len(self.lgq) - 1 - idx
        if n > 15:
            n = 15
            idx = len(self.lgq) - 1 - 15
        self.i('s_waitcnt lgkmcnt(%d)' % n)
        self.lgq = self.lgq[idx + 1:]

    def wait_all(self, vm=True, lg=True):
        s = []
        if vm:
            s.append('vmcnt(0)')
            self.vmq = []
        if lg:
            s.append('lgkmcnt(0)')
            self.lgq = []
        self.i('s_waitcnt ' + ' '.join(s))

    def text(self):
        return '\n'.join(self.lines) + '\n'


def vr(b, n=None):
    if n is None or n == 1:
        return 'v%d' % b
    return 'v[%d:%d]' % (b, b + n - 1)


def ar(b, n=None):
    if n is None or n == 1:
        return 'a%d' % b
    return 'a[%d:%d]' % (b, b + n - 1)


def sr(b, n=None):
    if n is None or n == 1:
        return 's%d' % b
    return 's[%d:%d]' % (b, b + n - 1)
```

```python
import sys, math
sys.path.insert(0, 'dev')
from asmlib import *
from gen import srd, f32bits, WS_H, WS_PQ, WS_KVP, WS_KVF, WS_FL, WS_G, H_BYTES, PQ_BYTES, KVP_BYTES, KVF_BYTES, BIG

RSF = 336
K2_LDS = 4 * 64 * RSF
K2_ACC = 256
K2_VGPR = 512

S_RB, S_CB, S_W = 4, 5, 6
S_H, S_PQ, S_KVP, S_KVF, S_FL, S_G, S_WD, S_WO, S_OUT = 40, 44, 48, 52, 56, 60, 64, 68, 72
S_A0, S_SA, S_SW, S_RINGB, S_T0, S_T1, S_T2, S_T3, S_PSEL, S_CNT, S_HB, S_PQB = 76, 77, 78, 79, 80, 81, 82, 83, 84, 85, 86, 87

V_L, V_G, V_R, V_C = 1, 2, 3, 4
V_A = 5
V_PQ0 = 10
V_PQ1 = 14
V_DW = 18
V_TR = 23
V_KV = 24
V_GT = 28
V_T = 32
V_ACC = 40
V_OOP = 120
V_D = 200
V_SV = 232
V_FLG = 252

A_W = 0
A_A = 40
A_HD = 104


def chunk_decode(A, inst, vpos, vch, tmp):
    A.i('v_add_u32 v%d, %d, v0' % (vch, 64 * inst))
    A.i('v_mul_u32_u24 v%d, 205, v%d' % (vpos, vch))
    A.i('v_lshrrev_b32 v%d, 11, v%d' % (vpos, vpos))
    A.i('v_mul_u32_u24 v%d, 10, v%d' % (tmp, vpos))
    A.i('v_sub_u32 v%d, v%d, v%d' % (vch, vch, tmp))


def producer_loads(A, sidx, ssel, base, tag):
    A.i('s_lshl_b32 s%d, s%d, 9' % (S_T0, sidx))
    A.i('s_add_u32 s%d, s%d, s%d' % (S_T0, S_T0, ssel))
    A.i('v_lshlrev_b32 v%d, 3, v0' % V_T)
    for rb in range(8):
        A.i('buffer_load_dwordx2 %s, v%d, s[%d:%d], s%d offen' % (vr(base + 2 * rb, 2), V_T, S_KVP, S_KVP + 3, S_T0),
            tag=tag)
        if rb < 7:
            A.i('s_add_u32 s%d, s%d, 0x20000' % (S_T0, S_T0))


def producer_store(A, sidx, ssel, base, tag):
    for h in range(2):
        A.i('v_add_f32 v%d, v%d, v%d' % (base + h, base + h, base + 2 + h))
        A.i('v_add_f32 v%d, v%d, v%d' % (base + 4 + h, base + 4 + h, base + 6 + h))
        A.i('v_add_f32 v%d, v%d, v%d' % (base + 8 + h, base + 8 + h, base + 10 + h))
        A.i('v_add_f32 v%d, v%d, v%d' % (base + 12 + h, base + 12 + h, base + 14 + h))
    for h in range(2):
        A.i('v_add_f32 v%d, v%d, v%d' % (base + h, base + h, base + 4 + h))
        A.i('v_add_f32 v%d, v%d, v%d' % (base + 8 + h, base + 8 + h, base + 12 + h))
    for h in range(2):
        A.i('v_add_f32 v%d, v%d, v%d' % (base + h, base + h, base + 8 + h))
    A.i('v_cvt_pk_bf16_f32 v%d, v%d, v%d' % (base, base, base + 1))
    A.i('s_lshl_b32 s%d, s%d, 8' % (S_T0, sidx))
    A.i('s_add_u32 s%d, s%d, s%d' % (S_T0, S_T0, ssel))
    A.i('v_lshlrev_b32 v%d, 2, v0' % V_T)
    A.i('buffer_store_dword v%d, v%d, s[%d:%d], s%d offen sc1' % (base, V_T, S_KVF, S_KVF + 3, S_T0), tag=tag)


def k2(A):
    A.raw('.globl k2_kernel\n.p2align 8\n.type k2_kernel,@function\nk2_kernel:')
    A.i('s_cmp_ge_u32 s2, 256')
    A.i('s_cbranch_scc1 L_k2_exit')
    A.i('s_load_dwordx16 s[16:31], s[0:1], 0')
    A.i('s_load_dwordx8 s[32:39], s[0:1], 64')
    A.i('s_and_b32 s3, s2, 7')
    A.i('s_lshr_b32 s7, s2, 3')
    A.i('s_lshl_b32 s3, s3, 2')
    A.i('s_lshr_b32 s%d, s7, 3' % S_RB)
    A.i('s_add_u32 s%d, s%d, s3' % (S_RB, S_RB))
    A.i('s_and_b32 s%d, s7, 7' % S_CB)
    A.i('v_lshrrev_b32 v1, 6, v0')
    A.i('v_readfirstlane_b32 s%d, v1' % S_W)
    A.i('v_and_b32 v0, 63, v0')
    A.i('v_and_b32 v%d, 15, v0' % V_L)
    A.i('v_lshrrev_b32 v%d, 4, v0' % V_G)
    A.i('v_bfe_u32 v%d, v0, 2, 2' % V_R)
    A.i('v_and_b32 v%d, 3, v0' % V_C)
    t0, t1, t2, t3 = V_T, V_T + 1, V_T + 2, V_T + 3
    A.i('s_lshl_b32 s%d, s%d, 6' % (S_T0, S_RB))
    A.i('v_add_u32 v%d, s%d, v%d' % (t0, S_T0, V_L))
    A.i('v_mul_u32_u24 v%d, 3456, v%d' % (V_A, t0))
    A.i('v_lshl_add_u32 v%d, v%d, 4, v%d' % (V_A, V_G, V_A))
    A.i('v_mul_u32_u24 v%d, 2560, v%d' % (V_PQ1, t0))
    A.i('v_lshl_add_u32 v%d, v%d, 4, v%d' % (V_PQ0, V_G, V_PQ1))
    A.i('v_add_u32 v%d, 64, v%d' % (V_PQ1, V_PQ1))
    for st in range(1, 4):
        A.i('v_add_u32 v%d, %d, v%d' % (V_A + st, st * 16 * 3456, V_A))
        A.i('v_add_u32 v%d, %d, v%d' % (V_PQ0 + st, st * 16 * 2560, V_PQ0))
        A.i('v_add_u32 v%d, %d, v%d' % (V_PQ1 + st, st * 16 * 2560, V_PQ1))
    A.i('v_lshlrev_b32 v%d, 2, v%d' % (t3, t0))
    A.i('s_mul_i32 s%d, s%d, 160' % (S_T1, S_CB))
    for inst in range(5):
        chunk_decode(A, inst, t0, t1, t2)
        A.i('v_and_b32 v%d, 7, v%d' % (t2, t0))
        A.i('v_and_b32 v%d, 8, v%d' % (V_T + 4, t0))
        A.i('v_lshl_or_b32 v%d, v%d, 1, v%d' % (t2, V_T + 4, t2))
        A.i('v_and_b32 v%d, 16, v%d' % (V_T + 4, t0))
        A.i('v_lshrrev_b32 v%d, 1, v%d' % (V_T + 4, V_T + 4))
        A.i('v_or_b32 v%d, v%d, v%d' % (t2, t2, V_T + 4))
        A.i('v_mul_u32_u24 v%d, 1280, v%d' % (t2, t2))
        A.i('v_lshl_add_u32 v%d, v%d, 4, v%d' % (t2, t1, t2))
        A.i('v_add_u32 v%d, s%d, v%d' % (V_DW + inst, S_T1, t2))
    A.i('s_mul_i32 s%d, s%d, 20480' % (S_RINGB, S_W))
    A.i('v_lshrrev_b32 v%d, 1, v%d' % (t0, V_G))
    A.i('v_lshlrev_b32 v%d, 4, v%d' % (t0, t0))
    A.i('v_and_b32 v%d, 1, v%d' % (t1, V_G))
    A.i('v_lshl_add_u32 v%d, v%d, 2, v%d' % (t0, t1, t0))
    A.i('v_add_u32 v%d, v%d, v%d' % (t0, t0, V_R))
    A.i('v_mul_u32_u24 v%d, 160, v%d' % (t0, t0))
    A.i('v_lshl_add_u32 v%d, v%d, 3, v%d' % (t0, V_C, t0))
    A.i('v_add_u32 v%d, s%d, v%d' % (V_TR, S_RINGB, t0))
    A.i('v_lshrrev_b32 v%d, 2, v%d' % (t0, V_L))
    A.i('v_add_u32 v%d, 16, v%d' % (t0, t0))
    A.i('v_cmp_eq_u32 vcc, 0, v%d' % V_C)
    A.i('v_cndmask_b32 v%d, 20, v%d, vcc' % (t0, t0))
    A.i('v_mul_u32_u24 v%d, 80, v%d' % (t0, t0))
    A.i('v_mul_u32_u24 v%d, 80, v%d' % (t1, V_L))
    A.i('v_lshl_add_u32 v%d, v%d, 4, v%d' % (V_KV, V_G, t1))
    A.i('v_lshl_add_u32 v%d, v%d, 4, v%d' % (V_KV + 1, V_G, t0))
    A.i('v_add_u32 v%d, 64, v%d' % (t1, t1))
    A.i('v_add_u32 v%d, 64, v%d' % (t0, t0))
    A.i('v_mov_b32 v%d, 0x%x' % (t2, BIG))
    A.i('v_cmp_eq_u32 vcc, 0, v%d' % V_G)
    A.i('v_cndmask_b32 v%d, v%d, v%d, vcc' % (V_KV + 2, t2, t1))
    A.i('v_cndmask_b32 v%d, v%d, v%d, vcc' % (V_KV + 3, t2, t0))
    A.i('s_mul_i32 s%d, s%d, 14' % (S_A0, S_W))
    A.i('s_cmp_eq_u32 s%d, 3' % S_W)
    A.i('s_cselect_b32 s%d, 1, 0' % S_T0)
    A.i('s_sub_u32 s%d, s%d, s%d' % (S_A0, S_A0, S_T0))
    A.i('s_cmp_eq_u32 s%d, 0' % S_W)
    A.i('s_cselect_b32 s%d, 0, 0x%x' % (S_PSEL, BIG))
    A.i('s_lshl_b32 s%d, s%d, 14' % (S_HB, S_W))
    A.i('s_mul_i32 s%d, s%d, 640' % (S_PQB, S_W))
    A.i('s_waitcnt lgkmcnt(0)')
    srd(A, S_H, 38, 39, H_BYTES, WS_H)
    srd(A, S_PQ, 38, 39, PQ_BYTES, WS_PQ)
    srd(A, S_KVP, 38, 39, KVP_BYTES, WS_KVP)
    srd(A, S_KVF, 38, 39, KVF_BYTES, WS_KVF)
    srd(A, S_FL, 38, 39, 1024, WS_FL)
    srd(A, S_G, 38, 39, 8192, WS_G)
    srd(A, S_WD, 30, 31, 1728 * 1280)
    srd(A, S_WO, 22, 23, 640 * 1280)
    srd(A, S_OUT, 34, 35, 2048 * 1280)
    for st in range(4):
        A.i('buffer_load_dword v%d, v%d, s[%d:%d], 0 offen offset:%d' % (V_GT + st, t3, S_G, S_G + 3, 64 * st), tag='g')
    producer_loads(A, 2, S_PSEL, V_D, 'pl')

    def L_H(n):
        A.i('s_add_u32 s%d, s%d, %d' % (S_T0, S_A0, n))
        A.i('s_lshl_b32 s%d, s%d, 6' % (S_SA, S_T0))
        A.i('s_mul_i32 s%d, s%d, 40960' % (S_SW, S_T0))
        if n == 13:
            A.i('s_cmp_ge_u32 s%d, 2' % S_W)
            A.i('s_cselect_b32 s%d, 0x%x, s%d' % (S_SA, BIG, S_SA))
            A.i('s_cselect_b32 s%d, 0x%x, s%d' % (S_SW, BIG, S_SW))
        for inst in range(5):
            A.i('s_add_u32 m0, s%d, %d' % (S_RINGB, (n % 4) * 5120 + inst * 1024))
            A.i('buffer_load_dwordx4 v%d, s[%d:%d], s%d offen lds' % (V_DW + inst, S_WD, S_WD + 3, S_SW), tag=('w', n))
        for st in range(4):
            A.i('buffer_load_dwordx4 %s, v%d, s[%d:%d], s%d offen' % (ar(A_A + (n % 4) * 16 + st * 4, 4), V_A + st,
                                                                    S_H, S_H + 3, S_SA), tag=('a', n))

    def L_W(e):
        n = 14 + e
        if e < 4:
            A.i('s_mov_b32 s%d, %d' % (S_SW, e * 1280))
        for inst in range(5):
            A.i('s_add_u32 m0, s%d, %d' % (S_RINGB, (n % 4) * 5120 + inst * 1024))
            if e < 4:
                A.i('buffer_load_dwordx4 v%d, s[%d:%d], s%d offen lds' % (V_DW + inst, S_WO, S_WO + 3, S_SW), tag=('w', n))
            else:
                A.i('buffer_load_dwordx4 v%d, s[%d:%d], 0 offen lds' % (V_A + inst, S_WO, S_WO + 3), tag=('w', n))

    def L_Opq(j):
        b = A_HD + (j % 3) * 48
        for st in range(4):
            A.i('buffer_load_dwordx4 %s, v%d, s[%d:%d], s%d offen offset:%d' % (
                ar(b + st * 8, 4), V_PQ0 + st, S_PQ, S_PQ + 3, S_PQB, j * 80), tag=('o', j))
            A.i('buffer_load_dwordx4 %s, v%d, s[%d:%d], s%d offen offset:%d' % (
                ar(b + st * 8 + 4, 4), V_PQ1 + st, S_PQ, S_PQ + 3, S_PQB, j * 80), tag=('o', j))

    def L_Okv(j):
        b = A_HD + (j % 3) * 48 + 32
        A.i('s_add_u32 s%d, s%d, %d' % (S_T0, S_HB, j * 2048))
        for k in range(4):
            A.i('buffer_load_dwordx4 %s, v%d, s[%d:%d], s%d offen sc1' % (
                ar(b + 4 * k, 4), V_KV + k, S_KVF, S_KVF + 3, S_T0), tag=('o', j))

    def tr_reads(n):
        A.wait_vm(('w', n))
        for t in range(5):
            for jh in range(2):
                A.i('ds_read_b64_tr_b16 %s, v%d offset:%d' % (
                    ar(A_W + (n % 2) * 20 + 4 * t + 2 * jh, 2), V_TR, (n % 4) * 5120 + 8 * jh * 160 + 32 * t),
                    tag=('wf', n))

    def acc(st, t):
        return V_ACC + (st * 5 + t) * 4

    def C_G(n, bsrc, first):
        for t in range(5):
            for st in range(4):
                c = '0' if first else vr(acc(st, t), 4)
                A.i('v_mfma_f32_16x16x32_bf16 %s, %s, %s, %s' % (vr(acc(st, t), 4), ar(A_W + (n % 2) * 20 + 4 * t, 4),
                                                               bsrc(st), c))

    L_H(0)
    L_H(1)
    L_H(2)
    A.wait_vm('pl')
    producer_store(A, 2, S_PSEL, V_D, 'ps')
    tr_reads(0)
    for n in range(14):
        if n + 3 <= 13:
            L_H(n + 3)
        if n == 2:
            A.wait_vm(('a', 3))
            A.i('v_mov_b32 v%d, 0x%x' % (t0, BIG))
            A.i('v_cmp_eq_u32 vcc, 0, v0')
            A.i('v_cndmask_b32 v%d, v%d, 0, vcc' % (t0, t0) if False else 'v_cndmask_b32 v%d, v%d, v0, vcc' % (t0, t0))
            A.i('v_mov_b32 v%d, 1' % t1)
            A.i('s_lshl_b32 s%d, s2, 2' % S_T0)
            A.i('s_add_u32 s%d, s%d, s%d' % (S_T0, S_T0, S_PSEL))
            A.i('buffer_store_dword v%d, v%d, s[%d:%d], s%d offen sc1' % (t1, t0, S_FL, S_FL + 3, S_T0), tag='fs')
        if n == 9:
            A.i('v_lshlrev_b32 v%d, 2, v0' % t2)
            A.i('s_lshl_b32 s%d, s%d, 8' % (S_T3, S_W))
            A.i('buffer_load_dword v%d, v%d, s[%d:%d], s%d offen sc1' % (V_FLG, t2, S_FL, S_FL + 3, S_T3), tag='fl')
        if n == 10:
            A.i('s_mul_i32 s%d, s%d, 160' % (S_T1, S_CB))
            A.i('s_mul_i32 s%d, s%d, %d' % (S_T2, S_W, 160 * 1280))
            A.i('s_add_u32 s%d, s%d, s%d' % (S_T1, S_T1, S_T2))
            for inst in range(5):
                chunk_decode(A, inst, t0, t1, t3)
                A.i('v_bfe_u32 v%d, v%d, 3, 1' % (t3, t0))
                A.i('v_and_b32 v%d, 3, v%d' % (V_T + 4, t0))
                A.i('v_lshl_add_u32 v%d, v%d, 2, v%d' % (t3, t3, V_T + 4))
                A.i('v_mul_u32_u24 v%d, 20, v%d' % (t3, t3))
                A.i('v_lshrrev_b32 v%d, 4, v%d' % (V_T + 4, t0))
                A.i('v_bfe_u32 v%d, v%d, 2, 1' % (V_T + 5, t0))
                A.i('v_lshl_add_u32 v%d, v%d, 1, v%d' % (V_T + 4, V_T + 4, V_T + 5))
                A.i('v_lshl_add_u32 v%d, v%d, 2, v%d' % (V_T + 5, V_T + 4, t3))
                A.i('v_add3_u32 v%d, v%d, v%d, 16' % (V_T + 4, V_T + 4, t3))
                A.i('v_lshlrev_b32 v%d, 4, v%d' % (t1, t1))
                A.i('v_add_u32 v%d, s%d, v%d' % (t1, S_T1, t1))
                A.i('v_mul_u32_u24 v%d, 1280, v%d' % (V_T + 5, V_T + 5))
                A.i('v_mul_u32_u24 v%d, 1280, v%d' % (V_T + 4, V_T + 4))
                A.i('v_add_u32 v%d, v%d, v%d' % (V_DW + inst, V_T + 5, t1))
                A.i('v_add_u32 v%d, v%d, v%d' % (V_A + inst, V_T + 4, t1))
        if n == 11:
            L_Opq(0)
            A.wait_vm('fl')
            A.i('v_cmp_ne_u32 vcc, 0, v%d' % V_FLG)
            A.fence()
            A.i('s_cmp_eq_u64 vcc, exec')
            A.i('s_cbranch_scc1 L_k2_ready')
            A.i('s_mov_b32 s%d, 0' % S_CNT)
            A.raw('L_k2_poll:')
            A.i('s_sleep 8')
            A.i('buffer_load_dword v%d, v%d, s[%d:%d], s%d offen sc1' % (V_FLG, t2, S_FL, S_FL + 3, S_T3), tag='fl')
            A.i('s_waitcnt vmcnt(0)')
            A.i('v_cmp_ne_u32 vcc, 0, v%d' % V_FLG)
            A.fence()
            A.i('s_cmp_eq_u64 vcc, exec')
            A.i('s_cbranch_scc1 L_k2_ready')
            A.i('s_add_u32 s%d, s%d, 1' % (S_CNT, S_CNT))
            A.i('s_cmp_lt_u32 s%d, 2000' % S_CNT)
            A.i('s_cbranch_scc1 L_k2_poll')
            A.i('s_lshl_b32 s%d, s%d, 6' % (S_CNT, S_W))
            A.i('s_add_u32 s%d, s%d, 64' % (S_T2, S_CNT))
            A.i('s_mov_b32 s%d, 0' % S_T1)
            A.raw('L_k2_self:')
            producer_loads(A, S_CNT, S_T1, V_D, 'pl')
            A.i('s_waitcnt vmcnt(0)')
            producer_store(A, S_CNT, S_T1, V_D, 'ps')
            A.i('s_waitcnt vmcnt(0)')
            A.fence()
            A.i('s_add_u32 s%d, s%d, 1' % (S_CNT, S_CNT))
            A.i('s_cmp_lt_u32 s%d, s%d' % (S_CNT, S_T2))
            A.i('s_cbranch_scc1 L_k2_self')
            A.raw('L_k2_ready:')
            A.vmq = [t for t in A.vmq if t not in ('fl', 'pl', 'ps')]
            A.hist = []
            L_Okv(0)
        if n == 12:
            L_Opq(1); L_Okv(1)
        if n == 13:
            L_Opq(2); L_Okv(2)
            L_W(0)
        if n < 13:
            tr_reads(n + 1)
        A.wait_vm(('a', n))
        A.wait_lg(('wf', n))
        C_G(n, lambda st: ar(A_A + (n % 4) * 16 + st * 4, 4), n == 0)

    A.wait_vm('g')
    for j in range(8):
        b = A_HD + (j % 3) * 48
        A.wait_vm(('o', j))
        for st in range(4):
            d = V_D + st * 8
            for mt in range(2):
                A.i('v_mfma_f32_16x16x32_bf16 %s, %s, %s, 0' % (vr(d + 4 * mt, 4), ar(b + 32 + 4 * mt, 4), ar(b + st * 8, 4)))
            for mt in range(2):
                A.i('v_mfma_f32_16x16x32_bf16 %s, %s, %s, %s' % (vr(d + 4 * mt, 4), ar(b + 40 + 4 * mt, 4),
                                                               ar(b + st * 8 + 4, 4), vr(d + 4 * mt, 4)))
        if j + 3 < 8:
            L_Opq(j + 3); L_Okv(j + 3)
        if 1 <= j <= 3:
            L_W(j)
        if j == 0:
            for st in range(4):
                A.i('v_sub_f32 v%d, 1.0, v%d' % (V_T + st, V_GT + st))
            for st in range(4):
                for k in range(20):
                    A.i('v_mul_f32 v%d, v%d, v%d' % (acc(st, 0) + k, acc(st, 0) + k, V_T + st))
        if j == 7:
            tr_reads(14)
        for st in range(4):
            d = V_D + st * 8
            A.i('v_add_f32 v%d, 0x%08x, v%d' % (d + 5, f32bits(1e-6), d + 5))
        for st in range(4):
            d = V_D + st * 8
            A.i('v_rcp_f32 v%d, v%d' % (d + 5, d + 5))
        for st in range(4):
            d = V_D + st * 8
            A.i('v_mul_f32 v%d, v%d, v%d' % (d + 5, d + 5, V_GT + st))
        for st in range(4):
            d = V_D + st * 8
            for e in range(5):
                dst = V_SV + st * 5 + e if j % 2 == 0 else d + e
                A.i('v_mul_f32 v%d, v%d, v%d' % (dst, d + e, d + 5))
            if j % 2 == 1:
                for e in range(5):
                    A.i('v_cvt_pk_bf16_f32 v%d, v%d, v%d' % (V_OOP + (e * 4 + st) * 4 + j // 2, V_SV + st * 5 + e, d + e))
    for e in range(5):
        n = 14 + e
        if e == 1:
            L_W(4)
        if e < 4:
            tr_reads(n + 1)
        A.wait_lg(('wf', n))
        C_G(n, lambda st: vr(V_OOP + (e * 4 + st) * 4, 4), False)

    A.i('s_barrier')
    A.i('s_lshl_b32 s%d, s%d, 6' % (S_T0, S_W))
    A.i('v_add_u32 v%d, s%d, v%d' % (t0, S_T0, V_L))
    A.i('v_mul_u32_u24 v%d, %d, v%d' % (t0, RSF, t0))
    A.i('v_lshl_add_u32 v%d, v%d, 4, v%d' % (t0, V_G, t0))
    for st in range(4):
        for t in range(5):
            A.i('ds_write_b128 v%d, %s offset:%d' % (t0, vr(acc(st, t), 4), st * 16 * RSF + 64 * t), tag='rw')
    A.i('s_lshl_b32 s%d, s%d, 4' % (S_T0, S_W))
    A.i('s_lshl_b32 s%d, s%d, 6' % (S_T1, S_RB))
    A.i('s_add_u32 s%d, s%d, s%d' % (S_T1, S_T1, S_T0))
    A.i('s_mul_i32 s%d, s%d, 160' % (S_T2, S_CB))
    VR, VO = V_A, V_PQ0
    for i in range(3):
        chunk_decode(A, i, t1, t2, t3)
        A.i('v_add_u32 v%d, s%d, v%d' % (t3, S_T0, t1))
        A.i('v_mul_u32_u24 v%d, %d, v%d' % (t3, RSF, t3))
        A.i('v_lshl_add_u32 v%d, v%d, 5, v%d' % (VR + i, t2, t3))
        A.i('v_add_u32 v%d, s%d, v%d' % (t3, S_T1, t1))
        A.i('v_mul_u32_u24 v%d, 1280, v%d' % (t3, t3))
        A.i('v_lshl_add_u32 v%d, v%d, 4, v%d' % (t3, t2, t3))
        A.i('v_add_u32 v%d, s%d, v%d' % (VO + i, S_T2, t3))
    A.i('v_mov_b32 v%d, 0x%x' % (t3, BIG))
    A.i('v_cmp_gt_u32 vcc, 32, v0')
    A.i('v_cndmask_b32 v%d, v%d, v%d, vcc' % (VO + 2, t3, VO + 2))
    A.wait_all(vm=False)
    A.i('s_barrier')
    R0 = V_ACC
    for i in range(3):
        for src in range(4):
            for h in range(2):
                A.i('ds_read_b128 %s, v%d offset:%d' % (vr(R0 + i * 32 + src * 8 + 4 * h, 4), VR + i,
                                                       src * 64 * RSF + 16 * h), tag=('rr', i))
    for i in range(3):
        A.wait_lg(('rr', i))
        b = R0 + i * 32
        for k in range(8):
            A.i('v_add_f32 v%d, v%d, v%d' % (b + k, b + k, b + 8 + k))
            A.i('v_add_f32 v%d, v%d, v%d' % (b + 16 + k, b + 16 + k, b + 24 + k))
        for k in range(8):
            A.i('v_add_f32 v%d, v%d, v%d' % (b + k, b + k, b + 16 + k))
        for k in range(4):
            A.i('v_cvt_pk_bf16_f32 v%d, v%d, v%d' % (b + 8 + k, b + 2 * k, b + 2 * k + 1))
        A.i('buffer_store_dwordx4 %s, v%d, s[%d:%d], 0 offen' % (vr(b + 8, 4), VO + i, S_OUT, S_OUT + 3), tag='st')
    A.raw('L_k2_exit:')
    A.i('s_endpgm')
```

```python
import sys, math
sys.path.insert(0, 'dev')
from asmlib import *

NAME = 'gated_mix__linear_kernel_hedgehog__geglu_ffn__prompt'
WS_H = 0
WS_PQ = 0x700000
WS_KVP = 0xC00000
WS_KVF = 0xD00000
WS_FL = 0xD10000
WS_G = 0xD20000
H_BYTES = 2048 * 1728 * 2
PQ_BYTES = 2048 * 1280 * 2
KVP_BYTES = 8 * 32 * 1024 * 4
KVF_BYTES = 32 * 1024 * 2
LOG2E = 1.4426950408889634
BIG = 0x40000000


def f32bits(x):
    import struct
    return struct.unpack('<I', struct.pack('<f', x))[0]


def srd(A, d, lo, hi, nrec, add=0):
    if add:
        A.i('s_add_u32 s%d, s%d, 0x%x' % (d, lo, add))
        A.i('s_addc_u32 s%d, s%d, 0' % (d + 1, hi))
        A.i('s_and_b32 s%d, s%d, 0xffff' % (d + 1, d + 1))
    else:
        A.i('s_mov_b32 s%d, s%d' % (d, lo))
        A.i('s_and_b32 s%d, s%d, 0xffff' % (d + 1, hi))
    A.i('s_mov_b32 s%d, 0x%x' % (d + 2, nrec))
    A.i('s_mov_b32 s%d, 0x20000' % (d + 3))


K1_LDS = 147456
WPHI = 131072
PK_OFF, PK_RS = 0, 352
PV_OFF, PV_RS = 90112, 160

S_IDX, S_C, S_RB, S_W = 3, 4, 5, 6
S_X, S_WT, S_O, S_P, S_GW, S_G, S_FL = 40, 44, 48, 52, 56, 60, 64
S_DMAB, S_KOFF, S_T0, S_T1, S_T2, S_CL2E = 68, 69, 70, 71, 72, 73
S_SUB = 74

V_L, V_G, V_R, V_C = 1, 2, 3, 4
V_X0, V_X1 = 5, 6
V_DMA = 7
V_TR0, V_TR1 = 10, 11
V_GWO = 12
V_T = 13
V_ACC = 20
V_XF = 116
V_GWF = 148
V_RING = 164
V_ACCG = 184
V_E = 192


def phi_frags_load(A, u, base):
    for tp in range(5):
        for kap in range(3):
            rb_ = base + (tp * 3 + kap) * 4
            for jh in range(2):
                if kap == 2 and jh == 1:
                    continue
                off = u * 3200 + (8 * kap + 4 * jh) * 40 + 8 * tp
                A.i('ds_read_b64_tr_b16 %s, v%d offset:%d' % (vr(rb_ + 2 * jh, 2), V_T, off), tag='wphi')
            if kap == 2:
                A.i('v_mov_b32 v%d, 0' % (rb_ + 2))
                A.i('v_mov_b32 v%d, 0' % (rb_ + 3))


def phi_compute(A, T, WP, BF, P, E, OUT):
    for t in range(5):
        A.i('v_cvt_pk_bf16_f32 v%d, v%d, v%d' % (BF + 2 * t, T[t], T[t] + 1))
        A.i('v_cvt_pk_bf16_f32 v%d, v%d, v%d' % (BF + 2 * t + 1, T[t] + 2, T[t] + 3))
    A.i('v_mov_b32 v%d, 0' % (BF + 10))
    A.i('v_mov_b32 v%d, 0' % (BF + 11))
    for kap in range(3):
        for tp in range(5):
            c = '0' if kap == 0 else vr(P + 4 * tp, 4)
            A.i('v_mfma_f32_16x16x32_bf16 %s, %s, %s, %s' % (vr(P + 4 * tp, 4), vr(WP + (tp * 3 + kap) * 4, 4),
                                                           vr(BF + 4 * kap, 4), c))
    mx, mn, sp, sn = E + 20, E + 21, E + 22, E + 23
    A.i('v_max3_f32 v%d, v%d, v%d, v%d' % (mx, P, P + 1, P + 2))
    A.i('v_min3_f32 v%d, v%d, v%d, v%d' % (mn, P, P + 1, P + 2))
    for k in range(3, 19, 2):
        A.i('v_max3_f32 v%d, v%d, v%d, v%d' % (mx, mx, P + k, P + k + 1))
        A.i('v_min3_f32 v%d, v%d, v%d, v%d' % (mn, mn, P + k, P + k + 1))
    A.i('v_max_f32 v%d, v%d, v%d' % (mx, mx, P + 19))
    A.i('v_min_f32 v%d, v%d, v%d' % (mn, mn, P + 19))
    A.i('v_mul_f32 v%d, s%d, v%d' % (mx, S_CL2E, mx))
    A.i('v_mul_f32 v%d, s%d, v%d' % (mn, S_CL2E, mn))
    for sign in range(2):
        s = sp if sign == 0 else sn
        for k in range(20):
            if sign == 0:
                A.i('v_fma_f32 v%d, v%d, s%d, -v%d' % (E + k, P + k, S_CL2E, mx))
            else:
                A.i('v_fma_f32 v%d, -v%d, s%d, v%d' % (E + k, P + k, S_CL2E, mn))
        for k in range(20):
            A.i('v_exp_f32 v%d, v%d' % (E + k, E + k))
        A.i('v_add_f32 v%d, v%d, v%d' % (s, E, E + 1))
        for k in range(2, 20):
            A.i('v_add_f32 v%d, v%d, v%d' % (s, s, E + k))
        A.i('v_rcp_f32 v%d, v%d' % (s, s))
        for k in range(20):
            A.i('v_mul_f32 v%d, v%d, v%d' % (E + k, E + k, s))
        for k in range(10):
            A.i('v_cvt_pk_bf16_f32 v%d, v%d, v%d' % (OUT + sign * 10 + k, E + 2 * k, E + 2 * k + 1))


def k1_role(A, role):
    gu = role == 'gu'
    nsub = 4 if gu else 2
    CH = 6 if gu else 10
    RS = CH * 16
    TPS = 3 if gu else 5
    NT = nsub * TPS
    cstride = 8 if gu else 40
    tstride = 32 if gu else 8
    rowbytes = 3456 if gu else 3840
    CPW = 192 if gu else 160
    SUBSZ = 64 * RS
    STAGE = nsub * SUBSZ
    NST = 10
    D = 4
    RING = 5
    A.label('L_k1_' + role)
    A.hist = []; A.vmq = []; A.lgq = []
    if gu:
        A.i('s_sub_u32 s%d, s%d, 12' % (S_SUB, S_C))
        A.i('s_cmp_lt_u32 s%d, 4' % S_W)
        A.i('s_cselect_b32 s%d, s26, s28' % S_T0)
        A.i('s_cselect_b32 s%d, s27, s29' % S_T1)
        srd(A, S_WT, S_T0, S_T1, 640 * 3456)
        srd(A, S_O, 38, 39, H_BYTES, WS_H)
        A.i('s_mul_i32 s%d, s%d, 96' % (S_T0, S_SUB))
        A.i('s_bfe_u32 s%d, s%d, 0x10001' % (S_T1, S_W))
        A.i('s_mul_i32 s%d, s%d, 48' % (S_T1, S_T1))
        A.i('s_add_u32 s%d, s%d, s%d' % (S_T0, S_T0, S_T1))
        A.i('s_and_b32 s%d, s%d, 1' % (S_T1, S_W))
        A.i('s_lshl_b32 s%d, s%d, 5' % (S_T1, S_T1))
    else:
        srd(A, S_WT, 18, 19, 640 * 3840)
        A.i('s_lshr_b32 s%d, s%d, 2' % (S_T2, S_W))
        if role == 'q':
            A.i('s_sub_u32 s%d, s%d, 8' % (S_SUB, S_C))
            srd(A, S_O, 38, 39, PQ_BYTES, WS_PQ)
            A.i('s_mul_i32 s%d, s%d, 160' % (S_T0, S_SUB))
            A.i('s_mul_i32 s%d, s%d, 80' % (S_T2, S_T2))
            A.i('s_add_u32 s%d, s%d, s%d' % (S_T0, S_T0, S_T2))
            A.i('s_mul_i32 s%d, s%d, 6400' % (S_T2, S_SUB))
            A.i('s_add_u32 s%d, s20, s%d' % (S_P, S_T2))
            A.i('s_addc_u32 s%d, s21, 0' % (S_P + 1))
            A.i('s_and_b32 s%d, s%d, 0xffff' % (S_P + 1, S_P + 1))
            A.i('s_mov_b32 s%d, 6400' % (S_P + 2))
            A.i('s_mov_b32 s%d, 0x20000' % (S_P + 3))
        else:
            A.i('s_mov_b32 s%d, s%d' % (S_SUB, S_C))
            srd(A, S_O, 38, 39, KVP_BYTES, WS_KVP)
            srd(A, S_GW, 32, 33, 1280)
            srd(A, S_G, 38, 39, 8192, WS_G)
            srd(A, S_FL, 38, 39, 1024, WS_FL)
            A.i('s_mul_i32 s%d, s%d, 80' % (S_T0, S_SUB))
            A.i('s_mul_i32 s%d, s%d, 640' % (S_T2, S_T2))
            A.i('s_add_u32 s%d, s%d, s%d' % (S_T0, S_T0, S_T2))
            A.i('s_add_u32 s%d, s%d, 640' % (S_T0, S_T0))
            A.i('s_mul_i32 s%d, s%d, 3200' % (S_T2, S_SUB))
            A.i('s_add_u32 s%d, s20, s%d' % (S_P, S_T2))
            A.i('s_addc_u32 s%d, s21, 0' % (S_P + 1))
            A.i('s_and_b32 s%d, s%d, 0xffff' % (S_P + 1, S_P + 1))
            A.i('s_mov_b32 s%d, 3200' % (S_P + 2))
            A.i('s_mov_b32 s%d, 0x20000' % (S_P + 3))
        A.i('s_and_b32 s%d, s%d, 3' % (S_T1, S_W))
        A.i('s_lshl_b32 s%d, s%d, 4' % (S_T1, S_T1))
    A.i('s_lshl_b32 s%d, s%d, 1' % (S_T0, S_T0))
    A.i('s_mul_i32 s%d, s%d, %d' % (S_DMAB, S_W, CPW * 16))
    mulc, sh = (171, 10) if gu else (205, 11)
    t0, t1, t2 = V_T, V_T + 1, V_T + 2
    for inst in range(3):
        A.i('v_add_u32 v%d, %d, v0' % (t0, 64 * inst))
        A.i('v_mul_u32_u24 v%d, %d, v%d' % (t1, mulc, t0))
        A.i('v_lshrrev_b32 v%d, %d, v%d' % (t1, sh, t1))
        A.i('v_mul_u32_u24 v%d, %d, v%d' % (t2, CH, t1))
        A.i('v_sub_u32 v%d, v%d, v%d' % (t0, t0, t2))
        A.i('v_add_u32 v%d, s%d, v%d' % (t1, S_T1, t1))
        A.i('v_and_b32 v%d, 0x33, v%d' % (t2, t1))
        A.i('v_and_b32 v%d, 4, v%d' % (V_T + 3, t1))
        A.i('v_lshl_or_b32 v%d, v%d, 1, v%d' % (t2, V_T + 3, t2))
        A.i('v_and_b32 v%d, 8, v%d' % (V_T + 3, t1))
        A.i('v_lshrrev_b32 v%d, 1, v%d' % (V_T + 3, V_T + 3))
        A.i('v_or_b32 v%d, v%d, v%d' % (t2, t2, V_T + 3))
        A.i('v_mul_u32_u24 v%d, %d, v%d' % (t2, rowbytes, t2))
        A.i('v_lshl_add_u32 v%d, v%d, 4, v%d' % (t2, t0, t2))
        A.i('v_add_u32 v%d, s%d, v%d' % (V_DMA + inst, S_T0, t2))
    A.i('v_lshrrev_b32 v%d, 1, v%d' % (t0, V_G))
    A.i('v_lshlrev_b32 v%d, 4, v%d' % (t0, t0))
    A.i('v_and_b32 v%d, 1, v%d' % (t1, V_G))
    A.i('v_lshl_add_u32 v%d, v%d, 2, v%d' % (t0, t1, t0))
    A.i('v_add_u32 v%d, v%d, v%d' % (t0, t0, V_R))
    A.i('v_mul_u32_u24 v%d, %d, v%d' % (t0, RS, t0))
    A.i('v_mul_u32_u24 v%d, %d, v%d' % (t1, cstride, V_C))
    A.i('v_add_u32 v%d, v%d, v%d' % (V_TR0, t0, t1))
    A.i('v_add_u32 v%d, %d, v%d' % (V_TR1, 2 * STAGE, V_TR0))
    A.i('v_lshlrev_b32 v%d, 4, v%d' % (V_GWO, V_G))

    def dma(i):
        buf = i % 4
        A.i('s_mov_b32 s%d, %d' % (S_KOFF, i * 64 * rowbytes))
        for inst in range(3):
            A.i('s_add_u32 m0, s%d, %d' % (S_DMAB, buf * STAGE + inst * 1024))
            half = (not gu) and inst == 2
            if half:
                A.i('s_mov_b64 exec, 0xffffffff')
            A.i('buffer_load_dwordx4 v%d, s[%d:%d], s%d offen lds' % (V_DMA + inst, S_WT, S_WT + 3, S_KOFF),
                tag=('dma', i))
            if half:
                A.i('s_mov_b64 exec, -1')

    def xload(i):
        b = i % 2
        for ks in range(2):
            for st in range(2):
                A.i('buffer_load_dwordx4 %s, v%d, s[%d:%d], 0 offen offset:%d' % (
                    vr(V_XF + b * 16 + (ks * 2 + st) * 4, 4), V_X0 + st, S_X, S_X + 3, i * 128 + ks * 64),
                    tag=('x', i))
        if role == 'kv':
            for ks in range(2):
                A.i('buffer_load_dwordx4 %s, v%d, s[%d:%d], 0 offen offset:%d' % (
                    vr(V_GWF + b * 8 + ks * 4, 4), V_GWO, S_GW, S_GW + 3, i * 128 + ks * 64), tag=('x', i))

    if not gu:
        A.i('s_lshl_b32 s%d, s%d, 11' % (S_T2, S_W))
        A.i('v_lshlrev_b32 v%d, 4, v0' % t0)
        A.i('v_add_u32 v%d, s%d, v%d' % (t0, S_T2, t0))
        A.i('v_add_u32 v%d, 1024, v%d' % (t1, t0))
        A.i('s_add_u32 m0, s%d, %d' % (S_T2, WPHI))
        A.i('buffer_load_dwordx4 v%d, s[%d:%d], 0 offen lds' % (t0, S_P, S_P + 3), tag='wphi')
        A.i('s_add_u32 m0, s%d, %d' % (S_T2, WPHI + 1024))
        A.i('buffer_load_dwordx4 v%d, s[%d:%d], 0 offen lds' % (t1, S_P, S_P + 3), tag='wphi')
    dma(0)
    xload(0)
    dma(1)
    xload(1)
    dma(2)

    slots = [(i, ks, n) for i in range(NST) for ks in range(2) for n in range(NT)]

    def issue_reads(sidx):
        i, ks, n = slots[sidx]
        if ks == 0 and n == 0:
            A.wait_vm(('dma', i))
            A.i('s_barrier')
            if i >= 1 and i + 2 < NST:
                dma(i + 2)
        buf = i % 4
        u, tt = n // TPS, n % TPS
        off = (buf % 2) * STAGE + u * SUBSZ + 32 * ks * RS + tt * tstride
        base = V_TR0 if buf < 2 else V_TR1
        rg = V_RING + (sidx % RING) * 4
        for jh in range(2):
            A.i('ds_read_b64_tr_b16 %s, v%d offset:%d' % (vr(rg + 2 * jh, 2), base, off + 8 * jh * RS),
                tag=('w', sidx))

    for s in range(D):
        issue_reads(s)
    for sidx, (i, ks, n) in enumerate(slots):
        if sidx + D < len(slots):
            issue_reads(sidx + D)
        if ks == 0 and n == 0:
            A.wait_vm(('x', i))
        A.wait_lg(('w', sidx))
        rg = V_RING + (sidx % RING) * 4
        for st in range(2):
            acc = V_ACC + (n * 2 + st) * 4
            xf = V_XF + (i % 2) * 16 + (ks * 2 + st) * 4
            c = '0' if (i == 0 and ks == 0) else vr(acc, 4)
            A.i('v_mfma_f32_16x16x32_bf16 %s, %s, %s, %s' % (vr(acc, 4), vr(rg, 4), vr(xf, 4), c))
        if role == 'kv' and n == 0:
            for st in range(2):
                acc = V_ACCG + st * 4
                xf = V_XF + (i % 2) * 16 + (ks * 2 + st) * 4
                c = '0' if (i == 0 and ks == 0) else vr(acc, 4)
                A.i('v_mfma_f32_16x16x32_bf16 %s, %s, %s, %s' % (vr(acc, 4), vr(V_GWF + (i % 2) * 8 + ks * 4, 4),
                                                               vr(xf, 4), c))
        if ks == 1 and n == NT - 1 and i + 2 < NST:
            xload(i + 2)

    def acc(n, st):
        return V_ACC + (n * 2 + st) * 4

    vrow = V_T + 4
    A.i('s_lshl_b32 s%d, s%d, 8' % (S_T0, S_RB))
    A.i('s_lshl_b32 s%d, s%d, 5' % (S_T1, S_W))
    A.i('s_add_u32 s%d, s%d, s%d' % (S_T0, S_T0, S_T1))
    A.i('v_add_u32 v%d, s%d, v%d' % (vrow, S_T0, V_L))
    if gu:
        C0 = -2.0 * math.sqrt(2.0 / math.pi) * LOG2E
        C1 = C0 * 0.044715
        vC0 = V_T + 5
        vO = V_T + 6
        A.i('v_mov_b32 v%d, 0x%08x' % (vC0, f32bits(C0)))
        A.i('s_mov_b32 s%d, 0x%08x' % (S_T2, f32bits(C1)))
        A.i('v_mul_u32_u24 v%d, 3456, v%d' % (vO, vrow))
        A.i('s_mul_i32 s%d, s%d, 192' % (S_T0, S_SUB))
        A.i('v_lshl_add_u32 v%d, v%d, 4, v%d' % (vO, V_G, vO))
        A.i('v_add_u32 v%d, s%d, v%d' % (vO, S_T0, vO))
        A.i('v_add_u32 v%d, %d, v%d' % (V_T + 3, 16 * 3456, vO))
        E = V_E
        k = 0
        for st in range(2):
            for a in range(3):
                e = E + (k % 2) * 24
                k += 1
                els = [(acc(2 * a + b, st) + r, acc(6 + 2 * a + b, st) + r) for b in range(2) for r in range(4)]
                for j, (x, u) in enumerate(els):
                    A.i('v_mul_f32 v%d, v%d, v%d' % (e + j, x, x))
                for j, (x, u) in enumerate(els):
                    A.i('v_fma_f32 v%d, v%d, s%d, v%d' % (e + j, e + j, S_T2, vC0))
                for j, (x, u) in enumerate(els):
                    A.i('v_mul_f32 v%d, v%d, v%d' % (e + j, e + j, x))
                for j, (x, u) in enumerate(els):
                    A.i('v_exp_f32 v%d, v%d' % (e + j, e + j))
                for j, (x, u) in enumerate(els):
                    A.i('v_mul_f32 v%d, v%d, v%d' % (e + 8 + j, x, u))
                for j, (x, u) in enumerate(els):
                    A.i('v_add_f32 v%d, 1.0, v%d' % (e + j, e + j))
                for j, (x, u) in enumerate(els):
                    A.i('v_rcp_f32 v%d, v%d' % (e + j, e + j))
                for j, (x, u) in enumerate(els):
                    A.i('v_mul_f32 v%d, v%d, v%d' % (e + j, e + j, e + 8 + j))
                for j in range(4):
                    A.i('v_cvt_pk_bf16_f32 v%d, v%d, v%d' % (e + 16 + j, e + 2 * j, e + 2 * j + 1))
                A.i('buffer_store_dwordx4 %s, v%d, s[%d:%d], 0 offen offset:%d' % (
                    vr(e + 16, 4), vO if st == 0 else V_T + 3, S_O, S_O + 3, 64 * a), tag='st')
        A.i('s_endpgm')
        return

    A.i('s_mov_b32 s%d, 0x%08x' % (S_CL2E, f32bits(LOG2E)))
    A.i('v_mul_u32_u24 v%d, 800, v%d' % (t0, V_G))
    A.i('v_mul_u32_u24 v%d, 40, v%d' % (t1, V_R))
    A.i('v_add3_u32 v%d, v%d, v%d, %s' % (t0, t0, t1, '0'))
    A.i('v_add_u32 v%d, %d, v%d' % (t0, WPHI, t0))
    A.i('v_mov_b32 v%d, %d' % (t1, WPHI + 8192))
    A.i('v_cmp_eq_u32 vcc, v%d, v%d' % (V_C, V_G))
    A.i('v_cndmask_b32 v%d, v%d, v%d, vcc' % (V_T, t1, t0))
    A.wait_vm('wphi')
    WP = V_XF
    BF = 176
    P = V_E
    E = V_E + 20
    OUT = V_E + 44
    if role == 'kv':
        pass
    if role == 'q':
        vO = V_T + 5
        A.i('v_mul_u32_u24 v%d, 2560, v%d' % (vO, vrow))
        A.i('v_mul_u32_u24 v%d, 80, v%d' % (t1, V_G))
        A.i('s_mul_i32 s%d, s%d, 640' % (S_T0, S_SUB))
        A.i('v_add3_u32 v%d, v%d, v%d, s%d' % (vO, vO, t1, S_T0))
        A.i('v_add_u32 v%d, %d, v%d' % (vO + 1, 16 * 2560, vO))
        for u in range(2):
            phi_frags_load(A, u, WP)
            A.wait_lg('wphi')
            for st in range(2):
                phi_compute(A, [acc(u * 5 + t, st) for t in range(5)], WP, BF, P, E, OUT)
                for k in range(5):
                    A.i('buffer_store_dwordx4 %s, v%d, s[%d:%d], 0 offen offset:%d' % (
                        vr(OUT + 4 * k, 4), vO + st, S_O, S_O + 3, u * 320 + 16 * k), tag='st')
        A.i('s_endpgm')
        return

    for st in range(2):
        a = V_ACCG + st * 4
        A.i('v_mul_f32 v%d, s%d, v%d' % (a + 1, S_CL2E, a))
        A.i('v_exp_f32 v%d, -v%d' % (a + 1, a + 1))
        A.i('v_add_f32 v%d, 1.0, v%d' % (a + 1, a + 1))
        A.i('v_rcp_f32 v%d, v%d' % (a + 1, a + 1))
    A.i('v_lshlrev_b32 v%d, 2, v%d' % (t1, vrow))
    A.i('v_mov_b32 v%d, 0x%x' % (t2, BIG))
    A.i('v_cmp_eq_u32 vcc, 0, v%d' % V_G)
    A.i('v_cndmask_b32 v%d, v%d, v%d, vcc' % (t1, t2, t1))
    A.i('s_cmp_eq_u32 s%d, 0' % S_SUB)
    A.i('s_cselect_b32 s%d, 0, 0x%x' % (S_T0, BIG))
    A.i('buffer_store_dword v%d, v%d, s[%d:%d], s%d offen' % (V_ACCG + 1, t1, S_G, S_G + 3, S_T0), tag='st')
    A.i('buffer_store_dword v%d, v%d, s[%d:%d], s%d offen offset:64' % (V_ACCG + 5, t1, S_G, S_G + 3, S_T0), tag='st')
    A.i('s_or_b32 s%d, s%d, s%d' % (S_T0, S_IDX, S_W))
    A.i('s_cmp_eq_u32 s%d, 0' % S_T0)
    A.i('s_cselect_b32 s%d, 0, 0x%x' % (S_T0, BIG))
    for k in range(4):
        A.i('v_mov_b32 v%d, 0' % (V_E + k))
    A.i('v_lshlrev_b32 v%d, 4, v0' % t1)
    A.i('buffer_store_dwordx4 %s, v%d, s[%d:%d], s%d offen' % (vr(V_E, 4), t1, S_FL, S_FL + 3, S_T0), tag='st')
    A.i('s_barrier')
    phi_frags_load(A, 0, WP)
    vPK, vPV = V_T + 5, V_T + 6
    A.i('s_lshl_b32 s%d, s%d, 5' % (S_T0, S_W))
    A.i('v_add_u32 v%d, s%d, v%d' % (t1, S_T0, V_L))
    A.i('v_mul_u32_u24 v%d, %d, v%d' % (vPK, PK_RS, t1))
    A.i('v_mul_u32_u24 v%d, 80, v%d' % (t2, V_G))
    A.i('v_add_u32 v%d, v%d, v%d' % (vPK, vPK, t2))
    A.i('v_mul_u32_u24 v%d, %d, v%d' % (vPV, PV_RS, t1))
    A.i('v_mul_u32_u24 v%d, 40, v%d' % (t2, V_G))
    A.i('v_add3_u32 v%d, v%d, v%d, %s' % (vPV, vPV, t2, '0'))
    A.i('v_add_u32 v%d, %d, v%d' % (vPV, PV_OFF, vPV))
    for st in range(2):
        for t in range(5):
            a = acc(5 + t, st)
            A.i('v_cvt_pk_bf16_f32 v%d, v%d, v%d' % (OUT + 2 * t, a, a + 1))
            A.i('v_cvt_pk_bf16_f32 v%d, v%d, v%d' % (OUT + 2 * t + 1, a + 2, a + 3))
        for t in range(5):
            A.i('ds_write_b64 v%d, %s offset:%d' % (vPV, vr(OUT + 2 * t, 2), st * 16 * PV_RS + 8 * t), tag='lw')
    A.wait_lg('wphi')
    BF = 176
    for st in range(2):
        phi_compute(A, [acc(t, st) for t in range(5)], WP, BF, P, E, OUT)
        for k in range(5):
            A.i('ds_write_b128 v%d, %s offset:%d' % (vPK, vr(OUT + 4 * k, 4), st * 16 * PK_RS + 16 * k), tag='lw')
    A.wait_all(vm=False)
    A.i('s_barrier')
    vA0, vA1, vB = V_T + 1, V_T + 2, V_T + 3
    A.i('v_lshrrev_b32 v%d, 1, v%d' % (t0, V_G))
    A.i('v_lshlrev_b32 v%d, 4, v%d' % (t0, t0))
    A.i('v_and_b32 v%d, 1, v%d' % (vA1, V_G))
    A.i('v_lshl_add_u32 v%d, v%d, 2, v%d' % (t0, vA1, t0))
    A.i('v_add_u32 v%d, v%d, v%d' % (t0, t0, V_R))
    A.i('s_lshr_b32 s%d, s%d, 1' % (S_T0, S_W))
    A.i('s_and_b32 s%d, s%d, 1' % (S_T1, S_W))
    A.i('s_mul_i32 s%d, s%d, 80' % (S_T2, S_T0))
    A.i('v_mul_u32_u24 v%d, %d, v%d' % (vA0, PK_RS, t0))
    A.i('v_lshl_add_u32 v%d, v%d, 3, v%d' % (vA0, V_C, vA0))
    A.i('v_add_u32 v%d, s%d, v%d' % (vA0, S_T2, vA0))
    A.i('v_add_u32 v%d, %d, v%d' % (vA1, 128 * PK_RS, vA0))
    A.i('s_mul_i32 s%d, s%d, 40' % (S_T2, S_T0))
    A.i('s_lshl_b32 s%d, s%d, 5' % (S_KOFF, S_T1))
    A.i('s_add_u32 s%d, s%d, s%d' % (S_T2, S_T2, S_KOFF))
    A.i('s_add_u32 s%d, s%d, %d' % (S_T2, S_T2, PV_OFF))
    A.i('v_mul_u32_u24 v%d, %d, v%d' % (vB, PV_RS, t0))
    A.i('v_lshl_add_u32 v%d, v%d, 3, v%d' % (vB, V_C, vB))
    A.i('v_add_u32 v%d, s%d, v%d' % (vB, S_T2, vB))
    ONES = 20
    for k in range(4):
        A.i('v_mov_b32 v%d, 0x3f803f80' % (ONES + k))
    DK = 24
    DZ = 36
    FR = 48
    for kk in range(8):
        f = FR + kk * 16
        for mt in range(3):
            for jh in range(2):
                A.i('ds_read_b64_tr_b16 %s, v%d offset:%d' % (
                    vr(f + 4 * mt + 2 * jh, 2), vA0 if kk < 4 else vA1,
                    (32 * (kk % 4) + 8 * jh) * PK_RS + 32 * mt), tag=('kf', kk))
        for jh in range(2):
            A.i('ds_read_b64_tr_b16 %s, v%d offset:%d' % (vr(f + 12 + 2 * jh, 2), vB, (32 * kk + 8 * jh) * PV_RS),
                tag=('kf', kk))
        if kk >= 1:
            k2 = kk - 1
            A.wait_lg(('kf', k2))
            f2 = FR + k2 * 16
            for mt in range(3):
                c = '0' if k2 == 0 else vr(DK + 4 * mt, 4)
                A.i('v_mfma_f32_16x16x32_bf16 %s, %s, %s, %s' % (vr(DK + 4 * mt, 4), vr(f2 + 4 * mt, 4), vr(f2 + 12, 4), c))
                c = '0' if k2 == 0 else vr(DZ + 4 * mt, 4)
                A.i('v_mfma_f32_16x16x32_bf16 %s, %s, %s, %s' % (vr(DZ + 4 * mt, 4), vr(f2 + 4 * mt, 4), vr(ONES, 4), c))
    k2 = 7
    A.wait_lg(('kf', k2))
    f2 = FR + k2 * 16
    for mt in range(3):
        A.i('v_mfma_f32_16x16x32_bf16 %s, %s, %s, %s' % (vr(DK + 4 * mt, 4), vr(f2 + 4 * mt, 4), vr(f2 + 12, 4), vr(DK + 4 * mt, 4)))
        A.i('v_mfma_f32_16x16x32_bf16 %s, %s, %s, %s' % (vr(DZ + 4 * mt, 4), vr(f2 + 4 * mt, 4), vr(ONES, 4), vr(DZ + 4 * mt, 4)))
    A.i('s_lshl_b32 s%d, s%d, 5' % (S_T2, S_RB))
    A.i('s_lshl_b32 s%d, s%d, 2' % (S_KOFF, S_SUB))
    A.i('s_add_u32 s%d, s%d, s%d' % (S_T2, S_T2, S_KOFF))
    A.i('s_add_u32 s%d, s%d, s%d' % (S_T2, S_T2, S_T0))
    A.i('s_lshl_b32 s%d, s%d, 12' % (S_T2, S_T2))
    va, vb, vza, vzb, vbig = V_E, V_E + 1, V_E + 2, V_E + 3, V_E + 4
    A.i('v_mov_b32 v%d, 0x%x' % (vbig, BIG))
    A.i('s_lshl_b32 s%d, s%d, 4' % (S_KOFF, S_T1))
    A.i('v_add_u32 v%d, s%d, v%d' % (t0, S_KOFF, V_L))
    A.i('v_mul_u32_u24 v%d, 160, v%d' % (va, t0))
    A.i('v_lshl_add_u32 v%d, v%d, 4, v%d' % (va, V_G, va))
    A.i('v_cmp_gt_u32 vcc, 20, v%d' % t0)
    A.i('v_cndmask_b32 v%d, v%d, v%d, vcc' % (va, vbig, va))
    A.i('v_cmp_gt_u32 vcc, 2, v%d' % V_G)
    A.i('v_cndmask_b32 v%d, v%d, v%d, vcc' % (vb, vbig, va))
    A.i('v_lshlrev_b32 v%d, 4, v%d' % (vza, V_G))
    A.i('v_add_u32 v%d, 3200, v%d' % (vza, vza))
    A.i('v_cmp_eq_u32 vcc, 16, v%d' % t0)
    A.i('v_cndmask_b32 v%d, v%d, v%d, vcc' % (vza, vbig, vza))
    A.i('v_cmp_gt_u32 vcc, 2, v%d' % V_G)
    A.i('v_cndmask_b32 v%d, v%d, v%d, vcc' % (vzb, vbig, vza))
    for mt in range(3):
        A.i('buffer_store_dwordx4 %s, v%d, s[%d:%d], s%d offen offset:%d' % (
            vr(DK + 4 * mt, 4), va if mt < 2 else vb, S_O, S_O + 3, S_T2, 64 * mt), tag='st')
        A.i('buffer_store_dwordx4 %s, v%d, s[%d:%d], s%d offen offset:%d' % (
            vr(DZ + 4 * mt, 4), vza if mt < 2 else vzb, S_O, S_O + 3, S_T2, 64 * mt), tag='st')
    A.i('s_endpgm')


def k1(A):
    A.raw('.globl k1_kernel\n.p2align 8\n.type k1_kernel,@function\nk1_kernel:')
    A.i('s_cmp_ge_u32 s2, 240')
    A.i('s_cbranch_scc1 L_k1_exit')
    A.i('s_load_dwordx16 s[16:31], s[0:1], 0')
    A.i('s_load_dwordx8 s[32:39], s[0:1], 64')
    A.i('s_and_b32 s3, s2, 7')
    A.i('s_lshr_b32 s4, s2, 3')
    A.i('s_mul_i32 s3, s3, 30')
    A.i('s_add_u32 s%d, s3, s4' % S_IDX)
    A.i('s_lshr_b32 s%d, s%d, 3' % (S_C, S_IDX))
    A.i('s_and_b32 s%d, s%d, 7' % (S_RB, S_IDX))
    A.i('v_lshrrev_b32 v1, 6, v0')
    A.i('v_readfirstlane_b32 s%d, v1' % S_W)
    A.i('v_and_b32 v0, 63, v0')
    A.i('v_and_b32 v%d, 15, v0' % V_L)
    A.i('v_lshrrev_b32 v%d, 4, v0' % V_G)
    A.i('v_bfe_u32 v%d, v0, 2, 2' % V_R)
    A.i('v_and_b32 v%d, 3, v0' % V_C)
    A.i('s_lshl_b32 s%d, s%d, 8' % (S_T0, S_RB))
    A.i('s_lshl_b32 s%d, s%d, 5' % (S_T1, S_W))
    A.i('s_add_u32 s%d, s%d, s%d' % (S_T0, S_T0, S_T1))
    A.i('v_add_u32 v%d, s%d, v%d' % (V_X0, S_T0, V_L))
    A.i('v_mul_u32_u24 v%d, 1280, v%d' % (V_X0, V_X0))
    A.i('v_lshl_add_u32 v%d, v%d, 4, v%d' % (V_X0, V_G, V_X0))
    A.i('v_add_u32 v%d, 20480, v%d' % (V_X1, V_X0))
    A.i('s_waitcnt lgkmcnt(0)')
    srd(A, S_X, 16, 17, 2048 * 1280)
    A.fence()
    A.i('s_cmp_lt_u32 s%d, 8' % S_C)
    A.i('s_cbranch_scc1 L_k1_kv')
    A.i('s_cmp_lt_u32 s%d, 12' % S_C)
    A.i('s_cbranch_scc1 L_k1_q')
    k1_role(A, 'gu')
    k1_role(A, 'q')
    k1_role(A, 'kv')
    A.raw('L_k1_exit:')
    A.i('s_endpgm')


def kd(name, vgpr, accum, sgpr=102):
    return '''.amdhsa_kernel %s
  .amdhsa_next_free_vgpr %d
  .amdhsa_next_free_sgpr %d
  .amdhsa_accum_offset %d
  .amdhsa_group_segment_fixed_size 0
  .amdhsa_kernarg_size 96
  .amdhsa_user_sgpr_count 2
  .amdhsa_user_sgpr_kernarg_segment_ptr 1
  .amdhsa_system_sgpr_workgroup_id_x 1
.end_amdhsa_kernel
''' % (name, vgpr, sgpr, accum)


if __name__ == '__main__':
    out = sys.argv[1] if len(sys.argv) > 1 else 'k.s'
    only1 = len(sys.argv) > 2 and sys.argv[2] == 'k1'
    A = Asm()
    A.raw('; @launch kernel=k1_kernel grid=(240,1,1) block=(512,1,1) lds=%d' % K1_LDS)
    if not only1:
        from gen2 import k2, K2_LDS, K2_VGPR, K2_ACC
        A.raw('; @launch kernel=k2_kernel grid=(256,1,1) block=(256,1,1) lds=%d' % K2_LDS)
    A.raw('.amdgcn_target "amdgcn-amd-amdhsa--gfx950"\n.text')
    k1(A)
    if not only1:
        A.hist = []; A.vmq = []; A.lgq = []
        k2(A)
    A.raw('.section .rodata,"a"\n.p2align 6')
    A.raw(kd('k1_kernel', 256, 256))
    if not only1:
        A.raw('.p2align 6')
        A.raw(kd('k2_kernel', K2_VGPR, K2_ACC))
    open(out, 'w').write(A.text())
    print('instrs', A.count, 'nops', A.nops)
```

```python
import re

TRANS = {'v_exp_f32', 'v_log_f32', 'v_rcp_f32', 'v_rsq_f32', 'v_sqrt_f32', 'v_sin_f32', 'v_cos_f32',
         'v_rcp_iflag_f32'}

_reg_re = re.compile(r'^(-|abs\()?\|?([vas])(\d+)\)?\|?$')
_rng_re = re.compile(r'^(-)?([vas])\[(\d+):(\d+)\]$')


def regs_of(op):
    op = op.strip()
    m = _rng_re.match(op)
    if m:
        return [(m.group(2), i) for i in range(int(m.group(3)), int(m.group(4)) + 1)]
    m = _reg_re.match(op)
    if m:
        return [(m.group(2), int(m.group(3)))]
    if op in ('vcc', 'exec', 'm0', 'scc'):
        return [(op, 0)]
    if op in ('vcc_lo', 'vcc_hi'):
        return [('vcc', 0)]
    return []


def split_ops(s):
    out, depth, cur = [], 0, ''
    for ch in s:
        if ch == '[' or ch == '(':
            depth += 1
        elif ch == ']' or ch == ')':
            depth -= 1
        if ch == ',' and depth == 0:
            out.append(cur.strip())
            cur = ''
        else:
            cur += ch
    if cur.strip():
        out.append(cur.strip())
    return out


class Ins:
    __slots__ = ('mn', 'cls', 'w', 'r', 'srcc', 'states', 'text', 'wide_store_data', 'lds_dma', 'dpp', 'ab')


def classify(text):
    t = text.split(';')[0].strip()
    parts = t.split(None, 1)
    mn = parts[0]
    rest = parts[1] if len(parts) > 1 else ''
    ops_raw = split_ops(rest)
    mods = []
    if ops_raw:
        last = ops_raw[-1].split()
        ops_raw[-1] = last[0]
        mods = last[1:]
    I = Ins()
    I.mn = mn
    I.text = text
    I.states = 1
    I.srcc = []
    I.ab = []
    I.wide_store_data = []
    I.lds_dma = False
    I.dpp = any(m.startswith(('quad_perm', 'row_', 'wave_')) for m in mods) or mn.endswith('_dpp')
    w, r = [], []
    if mn == 's_nop':
        I.cls = 'nop'
        I.states = int(ops_raw[0], 0) + 1
    elif mn.startswith('v_mfma'):
        I.cls = 'mfma'
        w = regs_of(ops_raw[0])
        I.ab = regs_of(ops_raw[1]) + regs_of(ops_raw[2])
        I.srcc = regs_of(ops_raw[3])
        r = I.ab + I.srcc
    elif mn.startswith('v_'):
        I.cls = 'valu'
        if mn.startswith('v_cmp'):
            w = regs_of(ops_raw[0])
            for o in ops_raw[1:]:
                r += regs_of(o)
        elif mn in ('v_add_co_u32', 'v_addc_co_u32', 'v_sub_co_u32', 'v_subb_co_u32', 'v_mad_u64_u32'):
            w = regs_of(ops_raw[0]) + regs_of(ops_raw[1])
            for o in ops_raw[2:]:
                r += regs_of(o)
        elif mn.startswith('v_permlane') and 'swap' in mn:
            w = regs_of(ops_raw[0]) + regs_of(ops_raw[1])
            r = list(w)
        else:
            w = regs_of(ops_raw[0])
            for o in ops_raw[1:]:
                r += regs_of(o)
            if mn.startswith(('v_fmac', 'v_pk_fmac', 'v_dot2c', 'v_writelane')):
                r += w
            if mn == 'v_cndmask_b32' and len(ops_raw) == 3:
                r += [('vcc', 0)]
    elif mn.startswith(('buffer_load', 'global_load')):
        if 'lds' in mods or mn.startswith('global_load_lds'):
            I.cls = 'vmem'
            I.lds_dma = True
            for o in ops_raw:
                r += regs_of(o)
            r += [('m0', 0)]
        else:
            I.cls = 'vmem'
            w = regs_of(ops_raw[0])
            for o in ops_raw[1:]:
                r += regs_of(o)
    elif mn.startswith(('buffer_store', 'global_store', 'buffer_atomic', 'global_atomic')):
        I.cls = 'vmem'
        for o in ops_raw:
            r += regs_of(o)
        if mn.endswith(('x3', 'x4')):
            di = 0 if mn.startswith('buffer') else 1
            I.wide_store_data = regs_of(ops_raw[di])
        if 'atomic' in mn and 'sc0' in mods:
            w = regs_of(ops_raw[0])
    elif mn.startswith('ds_read') or mn.startswith('ds_bpermute') or mn.startswith('ds_permute') or mn.startswith('ds_swizzle'):
        I.cls = 'ds'
        w = regs_of(ops_raw[0])
        for o in ops_raw[1:]:
            r += regs_of(o)
    elif mn.startswith('ds_'):
        I.cls = 'ds'
        for o in ops_raw:
            r += regs_of(o)
    elif mn.startswith(('s_load', 's_buffer_load', 's_memtime', 's_memrealtime')):
        I.cls = 'smem'
        w = regs_of(ops_raw[0])
        for o in ops_raw[1:]:
            r += regs_of(o)
    elif mn.startswith('s_'):
        I.cls = 'salu'
        if mn.startswith(('s_cmp', 's_waitcnt', 's_barrier', 's_branch', 's_cbranch', 's_endpgm', 's_sleep',
                          's_setprio', 's_bitcmp')):
            for o in ops_raw:
                r += regs_of(o)
        else:
            w = regs_of(ops_raw[0])
            for o in ops_raw[1:]:
                r += regs_of(o)
    else:
        raise ValueError('unknown instr: ' + text)
    I.w = set(w)
    I.r = set(r)
    I.srcc = set(I.srcc)
    I.ab = set(I.ab)
    I.wide_store_data = set(I.wide_store_data)
    return I


def need_states(P, C):
    n = 0
    vw = {x for x in P.w if x[0] in 'va'}
    sw = {x for x in P.w if x[0] == 's' or x[0] == 'vcc'}
    if P.cls == 'valu':
        if C.cls == 'mfma' and (vw & C.r):
            n = max(n, 2)
        if P.mn in TRANS and C.cls == 'valu' and C.mn not in TRANS and (vw & C.r):
            n = max(n, 1)
        if P.mn in TRANS and C.cls in ('vmem', 'ds') and (vw & C.r):
            n = max(n, 1)
        if sw:
            if C.cls == 'valu' and (sw & C.r):
                n = max(n, 4 if C.mn.startswith(('v_readlane', 'v_writelane')) else 2)
            if C.cls == 'vmem' and (sw & C.r):
                n = max(n, 5)
            if C.cls in ('salu', 'smem') and (sw & C.r):
                n = max(n, 1)
        if C.cls == 'valu' and C.mn.startswith(('v_readfirstlane', 'v_readlane')) and (vw & C.r):
            n = max(n, 1)
        if C.cls == 'valu' and (C.dpp or C.mn.startswith('v_permlane')) and (vw & C.r):
            n = max(n, 2)
    if P.cls == 'mfma':
        passes8 = '32x32' in P.mn
        if C.cls == 'mfma':
            if vw & C.ab:
                n = max(n, 12 if passes8 else 8)
            if vw & C.srcc:
                if P.w == C.srcc and P.mn == C.mn:
                    pass
                else:
                    n = max(n, 10 if passes8 else 6)
            elif vw & C.w:
                n = max(n, 10 if passes8 else 6)
        elif C.cls in ('valu', 'vmem', 'ds'):
            if vw & (C.r | C.w):
                n = max(n, 12 if passes8 else 8)
            if C.cls == 'valu' and (P.srcc & C.w):
                n = max(n, 7 if passes8 else 3)
    if P.cls == 'salu' and ('m0', 0) in P.w and C.lds_dma:
        n = max(n, 1)
    if P.wide_store_data and (P.wide_store_data & C.w):
        n = max(n, 2)
    return n


class Asm:
    def __init__(self):
        self.lines = []
        self.hist = []
        self.vmq = []
        self.lgq = []
        self.nops = 0
        self.count = 0

    def raw(self, text):
        self.lines.append(text)

    def comment(self, text):
        self.lines.append('    ; ' + text)

    def label(self, name):
        self.lines.append(name + ':')

    def fence(self):
        self.i('s_nop 7')
        self.i('s_nop 3')
        self.hist = []

    def i(self, text, tag=None):
        I = classify(text)
        dist = 0
        need = 0
        for P in reversed(self.hist):
            n = need_states(P, I)
            if n > dist:
                need = max(need, n - dist)
            dist += P.states
            if dist >= 20:
                break
        while need > 0:
            k = min(need, 16)
            N = classify('s_nop %d' % (k - 1))
            self.lines.append('    s_nop %d' % (k - 1))
            self.hist.append(N)
            self.nops += 1
            need -= k
        self.lines.append('    ' + text)
        self.hist.append(I)
        if len(self.hist) > 64:
            self.hist = self.hist[-32:]
        self.count += 1
        if I.cls == 'vmem':
            self.vmq.append(tag)
        elif I.cls == 'ds':
            self.lgq.append(tag)
        return I

    def wait_vm(self, tag):
        tags = tag if isinstance(tag, (list, set)) else [tag]
        idx = -1
        for k, t in enumerate(self.vmq):
            if t in tags:
                idx = k
        if idx < 0:
            return
        n = len(self.vmq) - 1 - idx
        if n > 63:
            n = 63
            idx = len(self.vmq) - 1 - 63
        self.i('s_waitcnt vmcnt(%d)' % n)
        self.vmq = self.vmq[idx + 1:]

    def wait_lg(self, tag):
        tags = tag if isinstance(tag, (list, set)) else [tag]
        idx = -1
        for k, t in enumerate(self.lgq):
            if t in tags:
                idx = k
        if idx < 0:
            return
        n = len(self.lgq) - 1 - idx
        if n > 15:
            n = 15
            idx = len(self.lgq) - 1 - 15
        self.i('s_waitcnt lgkmcnt(%d)' % n)
        self.lgq = self.lgq[idx + 1:]

    def wait_all(self, vm=True, lg=True):
        s = []
        if vm:
            s.append('vmcnt(0)')
            self.vmq = []
        if lg:
            s.append('lgkmcnt(0)')
            self.lgq = []
        self.i('s_waitcnt ' + ' '.join(s))

    stamp_on = False
    stamp_v = 255
    stamp_s = None
    stamp_n = 0
    def stamp(self, k):
        if not self.stamp_on:
            return
        self.i('s_memtime s[96:97]')
        self.i('s_waitcnt lgkmcnt(0)')
        self.lgq = []
        if self.stamp_s is not None:
            self.i('s_mov_b32 s%d, s96' % (self.stamp_s + k))
            self.stamp_n = max(self.stamp_n, k + 1)
        else:
            self.i('v_writelane_b32 v%d, s96, %d' % (self.stamp_v, k))

    def stamp_end(self, ws_lo, ws_hi, off, s_w, nw):
        if not self.stamp_on:
            return
        self.wait_all()
        self.stamp(14)
        self.stamp_dump(ws_lo, ws_hi, off, s_w, nw)

    def stamp_dump(self, ws_lo, ws_hi, off, s_w, nw):
        if not self.stamp_on:
            return
        self.i('s_add_u32 s92, s%d, 0x%x' % (ws_lo, off))
        self.i('s_addc_u32 s93, s%d, 0' % ws_hi)
        self.i('s_and_b32 s93, s93, 0xffff')
        self.i('s_mov_b32 s94, 0x100000')
        self.i('s_mov_b32 s95, 0x20000')
        self.i('s_mul_i32 s96, s2, %d' % nw)
        self.i('s_add_u32 s96, s96, s%d' % s_w)
        self.i('s_lshl_b32 s96, s96, 8')
        self.i('v_lshlrev_b32 v1, 2, v0')
        if self.stamp_s is not None:
            for k in range(self.stamp_n):
                self.i('v_writelane_b32 v%d, s%d, %d' % (self.stamp_v, self.stamp_s + k, k))
        self.i('buffer_store_dword v%d, v1, s[92:95], s96 offen' % self.stamp_v)

    def text(self):
        return '\n'.join(self.lines) + '\n'


def vr(b, n=None):
    if n is None or n == 1:
        return 'v%d' % b
    return 'v[%d:%d]' % (b, b + n - 1)


def ar(b, n=None):
    if n is None or n == 1:
        return 'a%d' % b
    return 'a[%d:%d]' % (b, b + n - 1)


def sr(b, n=None):
    if n is None or n == 1:
        return 's%d' % b
    return 's[%d:%d]' % (b, b + n - 1)
```

```python
import sys, math, os
sys.path.insert(0, 'dev')
from asmlib import *
from gen import (srd, f32bits, WS_H, WS_PQ, WS_KVP, WS_KVF, WS_FL, WS_G, WS_WF, WS_STAMP, H_BYTES, PQ_BYTES, KVP_BYTES,
                 KVF_BYTES, WF_BYTES, BIG)

RSF = 336
K2_LDS = 4 * 64 * RSF
K2_ACC = 256
K2_VGPR = 512

S_RB, S_CB, S_W = 4, 5, 6
S_H, S_PQ, S_KVP, S_KVF, S_FL, S_G, S_WF, S_OUT = 40, 44, 48, 52, 56, 60, 64, 72
S_A0, S_SA, S_SW, S_T0, S_T1, S_T2, S_T3, S_PSEL, S_CNT, S_HB, S_PQB, S_HB0, S_WB0 = 76, 77, 78, 80, 81, 82, 83, 84, 85, 86, 87, 88, 89

V_L, V_G, V_R, V_C = 1, 2, 3, 4
V_A = 5
V_PQ0 = 10
V_PQ1 = 14
V_L16 = 18
V_L16B = 19
V_KV2 = 20
V_P16, V_P8 = 21, 22
V_GT = 28
V_T = 32
V_ACC = 40
V_OOP = 120
V_D = 200
V_SV = 232
V_FLG = 252

A_R = 0
A_HD = 144


def chunk_decode(A, inst, vpos, vch, tmp):
    A.i('v_add_u32 v%d, %d, v0' % (vch, 64 * inst))
    A.i('v_mul_u32_u24 v%d, 205, v%d' % (vpos, vch))
    A.i('v_lshrrev_b32 v%d, 11, v%d' % (vpos, vpos))
    A.i('v_mul_u32_u24 v%d, 10, v%d' % (tmp, vpos))
    A.i('v_sub_u32 v%d, v%d, v%d' % (vch, vch, tmp))


def producer_loads(A, sidx, ssel, base, tag):
    A.i('s_mul_i32 s%d, s%d, 640' % (S_T0, sidx))
    A.i('s_add_u32 s%d, s%d, s%d' % (S_T0, S_T0, ssel))
    for rb in range(8):
        A.i('buffer_load_dwordx4 %s, v%d, s[%d:%d], s%d offen' % (vr(base + 4 * rb, 4), V_P16, S_KVP, S_KVP + 3, S_T0),
            tag=tag)
        if rb < 7:
            A.i('s_add_u32 s%d, s%d, %d' % (S_T0, S_T0, 32 * 5120))


def producer_store(A, sidx, ssel, base, tag):
    for step in (16, 8, 4):
        for k in range(step):
            A.i('v_add_f32 v%d, v%d, v%d' % (base + k, base + k, base + step + k))
    A.i('v_cvt_pk_bf16_f32 v%d, v%d, v%d' % (base, base, base + 1))
    A.i('v_cvt_pk_bf16_f32 v%d, v%d, v%d' % (base + 1, base + 2, base + 3))
    A.i('s_mul_i32 s%d, s%d, 320' % (S_T0, sidx))
    A.i('s_add_u32 s%d, s%d, s%d' % (S_T0, S_T0, ssel))
    A.i('buffer_store_dwordx2 %s, v%d, s[%d:%d], s%d offen sc1' % (vr(base, 2), V_P8, S_KVF, S_KVF + 3, S_T0), tag=tag)


def k2(A):
    A.raw('.globl k2_kernel\n.p2align 8\n.type k2_kernel,@function\nk2_kernel:')
    A.i('s_cmp_ge_u32 s2, 256')
    A.i('s_cbranch_scc1 L_k2_exit')
    A.i('s_load_dwordx8 s[32:39], s[0:1], 64')
    A.i('s_and_b32 s3, s2, 7')
    A.i('s_lshr_b32 s7, s2, 3')
    A.i('s_lshl_b32 s3, s3, 2')
    A.i('s_lshr_b32 s%d, s7, 3' % S_RB)
    A.i('s_add_u32 s%d, s%d, s3' % (S_RB, S_RB))
    A.i('s_and_b32 s%d, s7, 7' % S_CB)
    A.i('v_lshrrev_b32 v1, 6, v0')
    A.i('v_readfirstlane_b32 s%d, v1' % S_W)
    A.i('v_and_b32 v0, 63, v0')
    A.i('v_and_b32 v%d, 15, v0' % V_L)
    A.i('v_lshrrev_b32 v%d, 4, v0' % V_G)
    t0, t1, t2, t3 = V_T, V_T + 1, V_T + 2, V_T + 3
    A.i('v_lshlrev_b32 v%d, 4, v0' % V_L16)
    A.i('v_add_u32 v%d, 4096, v%d' % (V_L16B, V_L16))
    for st in range(4):
        A.i('v_add_u32 v%d, %d, v%d' % (V_A + st, st * 54 * 1024, V_L16))
    A.i('s_mul_i32 s%d, s%d, 14' % (S_A0, S_W))
    A.i('s_cmp_eq_u32 s%d, 3' % S_W)
    A.i('s_cselect_b32 s%d, 1, 0' % S_T0)
    A.i('s_sub_u32 s%d, s%d, s%d' % (S_A0, S_A0, S_T0))
    A.i('s_mul_i32 s%d, s%d, 216' % (S_HB0, S_RB))
    A.i('s_add_u32 s%d, s%d, s%d' % (S_HB0, S_HB0, S_A0))
    A.i('s_lshl_b32 s%d, s%d, 10' % (S_HB0, S_HB0))
    A.i('s_mul_i32 s%d, s%d, 74' % (S_WB0, S_CB))
    A.i('s_add_u32 s%d, s%d, s%d' % (S_T0, S_WB0, S_A0))
    A.i('s_mul_i32 s%d, s%d, 5120' % (S_SW, S_T0))
    A.i('s_mov_b32 s%d, s%d' % (S_SA, S_HB0))
    A.i('s_waitcnt lgkmcnt(0)')
    srd(A, S_WF, 38, 39, WF_BYTES, WS_WF)
    srd(A, S_H, 38, 39, H_BYTES, WS_H)
    A.stamp(0)
    A.stamp_rt(8)

    def ld_w(n, soff):
        b = A_R + (n % 4) * 36
        for t in range(5):
            A.i('buffer_load_dwordx4 %s, v%d, s[%d:%d], s%d offen offset:%d' % (
                ar(b + 4 * t, 4), V_L16 if t < 4 else V_L16B, S_WF, S_WF + 3, soff, 1024 * t if t < 4 else 0), tag=('w', n))

    def L_H(n):
        if n == 13:
            A.i('s_cmp_ge_u32 s%d, 2' % S_W)
            A.i('s_cselect_b32 s%d, 0x%x, s%d' % (S_SA, BIG, S_SA))
            A.i('s_cselect_b32 s%d, 0x%x, s%d' % (S_SW, BIG, S_SW))
        ld_w(n, S_SW)
        b = A_R + (n % 4) * 36 + 20
        for st in range(4):
            A.i('buffer_load_dwordx4 %s, v%d, s[%d:%d], s%d offen' % (ar(b + st * 4, 4), V_A + st, S_H, S_H + 3, S_SA),
                tag=('w', n))
        if n < 13:
            A.i('s_add_u32 s%d, s%d, 1024' % (S_SA, S_SA))
            A.i('s_add_u32 s%d, s%d, 5120' % (S_SW, S_SW))

    L_H(0)
    L_H(1)
    A.i('v_bfe_u32 v%d, v0, 2, 2' % V_R)
    A.i('v_and_b32 v%d, 3, v0' % V_C)
    srd(A, S_PQ, 38, 39, PQ_BYTES, WS_PQ)
    srd(A, S_KVP, 38, 39, KVP_BYTES, WS_KVP)
    srd(A, S_KVF, 38, 39, KVF_BYTES, WS_KVF)
    srd(A, S_FL, 38, 39, 1024, WS_FL)
    srd(A, S_G, 38, 39, 8192, WS_G)
    srd(A, S_OUT, 34, 35, 2048 * 1280)
    A.i('v_mov_b32 v%d, 0x%x' % (t2, BIG))
    A.i('v_cmp_gt_u32 vcc, 40, v0')
    A.i('v_lshlrev_b32 v%d, 3, v0' % t1)
    A.i('v_cndmask_b32 v%d, v%d, v%d, vcc' % (V_P16, t2, V_L16))
    A.i('v_cndmask_b32 v%d, v%d, v%d, vcc' % (V_P8, t2, t1))
    A.i('s_cmp_eq_u32 s%d, 0' % S_W)
    A.i('s_cselect_b32 s%d, 0, 0x%x' % (S_PSEL, BIG))
    producer_loads(A, 2, S_PSEL, V_D, 'pl')
    L_H(2)
    A.i('v_cmp_eq_u32 vcc, 0, v%d' % V_G)
    A.i('v_cndmask_b32 v%d, v%d, v%d, vcc' % (V_KV2, t2, V_L16))
    A.i('v_lshlrev_b32 v%d, 4, v%d' % (t0, V_L))
    A.i('v_add_u32 v%d, 1024, v%d' % (t0, t0))
    for st in range(4):
        A.i('v_add_u32 v%d, %d, v%d' % (V_PQ0 + st, st * 32 * 1280, V_L16))
        A.i('v_add_u32 v%d, %d, v%d' % (V_PQ1 + st, st * 32 * 1280, t0))
    A.i('s_lshl_b32 s%d, s%d, 7' % (S_PQB, S_RB))
    A.i('s_lshl_b32 s%d, s%d, 3' % (S_T0, S_W))
    A.i('s_add_u32 s%d, s%d, s%d' % (S_PQB, S_PQB, S_T0))
    A.i('s_mul_i32 s%d, s%d, 1280' % (S_PQB, S_PQB))
    A.i('s_mul_i32 s%d, s%d, %d' % (S_HB, S_W, 8 * 2560))
    A.i('s_lshl_b32 s%d, s%d, 8' % (S_T0, S_RB))
    A.i('v_lshlrev_b32 v%d, 2, v%d' % (t3, V_L))
    for st in range(4):
        A.i('buffer_load_dword v%d, v%d, s[%d:%d], s%d offen offset:%d' % (V_GT + st, t3, S_G, S_G + 3, S_T0, 64 * st), tag='g')

    def hslot(j):
        return [A_HD, A_HD + 48, 0][j % 3]

    def L_Opq(j):
        b = hslot(j)
        A.i('s_add_u32 s%d, s%d, %d' % (S_T1, S_PQB, j * 1280))
        for st in range(4):
            A.i('buffer_load_dwordx4 %s, v%d, s[%d:%d], s%d offen' % (
                ar(b + st * 8, 4), V_PQ0 + st, S_PQ, S_PQ + 3, S_T1), tag=('o', j))
            A.i('buffer_load_dwordx4 %s, v%d, s[%d:%d], s%d offen' % (
                ar(b + st * 8 + 4, 4), V_PQ1 + st, S_PQ, S_PQ + 3, S_T1), tag=('o', j))

    def L_Okv(j):
        b = hslot(j) + 32
        A.i('s_add_u32 s%d, s%d, %d' % (S_T0, S_HB, j * 2560))
        for k in range(4):
            A.i('buffer_load_dwordx4 %s, v%d, s[%d:%d], s%d offen offset:%d sc1' % (
                ar(b + 4 * k, 4), V_L16 if k < 2 else V_KV2, S_KVF, S_KVF + 3, S_T0, [0, 1024, 2048, 2304][k]), tag=('o', j))

    def L_W(e):
        A.i('s_mul_i32 s%d, s%d, 5' % (S_T0, S_W))
        A.i('s_add_u32 s%d, s%d, s%d' % (S_T0, S_T0, S_WB0))
        A.i('s_add_u32 s%d, s%d, %d' % (S_T0, S_T0, 54 + e))
        A.i('s_mul_i32 s%d, s%d, 5120' % (S_T0, S_T0))
        b = wslot(e)
        for t in range(5):
            A.i('buffer_load_dwordx4 %s, v%d, s[%d:%d], s%d offen offset:%d' % (
                ar(b + 4 * t, 4), V_L16 if t < 4 else V_L16B, S_WF, S_WF + 3, S_T0, 1024 * t if t < 4 else 0), tag=('wo', e))

    def wslot(e):
        return [48, 68, 88, 108, 240 - 0][e] if e < 4 else None

    def acc(st, t):
        return V_ACC + (st * 5 + t) * 4

    def C_G(wbase, bsrc, first):
        for t in range(5):
            for st in range(4):
                c = '0' if first else vr(acc(st, t), 4)
                A.i('v_mfma_f32_16x16x32_bf16 %s, %s, %s, %s' % (vr(acc(st, t), 4), ar(wbase + 4 * t, 4), bsrc(st), c))

    for n in range(14):
        if n + 3 <= 13:
            L_H(n + 3)
        if n == 1:
            A.wait_vm('pl')
            producer_store(A, 2, S_PSEL, V_D, 'ps')
        if n == 3:
            A.wait_vm(('w', 5))
            A.i('v_mov_b32 v%d, 0x%x' % (t0, BIG))
            A.i('v_cmp_eq_u32 vcc, 0, v0')
            A.i('v_cndmask_b32 v%d, v%d, v0, vcc' % (t0, t0))
            A.i('v_mov_b32 v%d, 1' % t1)
            A.i('s_lshl_b32 s%d, s2, 2' % S_T0)
            A.i('s_add_u32 s%d, s%d, s%d' % (S_T0, S_T0, S_PSEL))
            A.i('buffer_store_dword v%d, v%d, s[%d:%d], s%d offen sc1' % (t1, t0, S_FL, S_FL + 3, S_T0), tag='fs')
        if n == 9:
            A.i('v_lshlrev_b32 v%d, 2, v0' % t2)
            A.i('s_lshl_b32 s%d, s%d, 8' % (S_T3, S_W))
            A.i('buffer_load_dword v%d, v%d, s[%d:%d], s%d offen sc1' % (V_FLG, t2, S_FL, S_FL + 3, S_T3), tag='fl')
        if n == 11:
            L_Opq(0)
            A.wait_vm('fl')
            A.i('v_cmp_ne_u32 vcc, 0, v%d' % V_FLG)
            A.fence()
            A.i('s_cmp_eq_u64 vcc, exec')
            A.i('s_cbranch_scc1 L_k2_ready')
            A.i('s_mov_b32 s%d, 0' % S_CNT)
            A.raw('L_k2_poll:')
            A.i('s_sleep 8')
            A.i('buffer_load_dword v%d, v%d, s[%d:%d], s%d offen sc1' % (V_FLG, t2, S_FL, S_FL + 3, S_T3), tag='fl')
            A.i('s_waitcnt vmcnt(0)')
            A.i('v_cmp_ne_u32 vcc, 0, v%d' % V_FLG)
            A.fence()
            A.i('s_cmp_eq_u64 vcc, exec')
            A.i('s_cbranch_scc1 L_k2_ready')
            A.i('s_add_u32 s%d, s%d, 1' % (S_CNT, S_CNT))
            A.i('s_cmp_lt_u32 s%d, 2000' % S_CNT)
            A.i('s_cbranch_scc1 L_k2_poll')
            A.i('s_lshl_b32 s%d, s%d, 6' % (S_CNT, S_W))
            A.i('s_add_u32 s%d, s%d, 64' % (S_T2, S_CNT))
            A.i('s_mov_b32 s%d, 0' % S_T1)
            A.raw('L_k2_self:')
            producer_loads(A, S_CNT, S_T1, V_D, 'pl')
            A.i('s_waitcnt vmcnt(0)')
            producer_store(A, S_CNT, S_T1, V_D, 'ps')
            A.i('s_waitcnt vmcnt(0)')
            A.fence()
            A.i('s_add_u32 s%d, s%d, 1' % (S_CNT, S_CNT))
            A.i('s_cmp_lt_u32 s%d, s%d' % (S_CNT, S_T2))
            A.i('s_cbranch_scc1 L_k2_self')
            A.raw('L_k2_ready:')
            A.vmq = [t for t in A.vmq if t not in ('fl', 'pl', 'ps')]
            A.hist = []
            L_Okv(0)
        if n == 12:
            L_Opq(1); L_Okv(1)
        A.wait_vm(('w', n))
        b = A_R + (n % 4) * 36
        C_G(b, lambda st: ar(b + 20 + st * 4, 4), n == 0)
        if n in (0, 5, 10):
            A.stamp(1 + n // 5)
    A.stamp(4)
    L_Opq(2); L_Okv(2)
    A.wait_vm('g')
    for j in range(8):
        b = hslot(j)
        A.wait_vm(('o', j))
        for st in range(4):
            d = V_D + st * 8
            for mt in range(2):
                A.i('v_mfma_f32_16x16x32_bf16 %s, %s, %s, 0' % (vr(d + 4 * mt, 4), ar(b + 32 + 4 * mt, 4), ar(b + st * 8, 4)))
            for mt in range(2):
                A.i('v_mfma_f32_16x16x32_bf16 %s, %s, %s, %s' % (vr(d + 4 * mt, 4), ar(b + 40 + 4 * mt, 4),
                                                               ar(b + st * 8 + 4, 4), vr(d + 4 * mt, 4)))
        if j + 3 < 8:
            L_Opq(j + 3); L_Okv(j + 3)
        if 4 <= j <= 7:
            L_W(j - 4)
        if j == 0:
            for st in range(4):
                A.i('v_sub_f32 v%d, 1.0, v%d' % (V_T + st, V_GT + st))
            for st in range(4):
                for k in range(20):
                    A.i('v_mul_f32 v%d, v%d, v%d' % (acc(st, 0) + k, acc(st, 0) + k, V_T + st))
        for st in range(4):
            d = V_D + st * 8
            A.i('v_add_f32 v%d, 0x%08x, v%d' % (d + 5, f32bits(1e-6), d + 5))
        for st in range(4):
            d = V_D + st * 8
            A.i('v_rcp_f32 v%d, v%d' % (d + 5, d + 5))
        for st in range(4):
            d = V_D + st * 8
            A.i('v_mul_f32 v%d, v%d, v%d' % (d + 5, d + 5, V_GT + st))
        for st in range(4):
            d = V_D + st * 8
            for e in range(5):
                dst = V_SV + st * 5 + e if j % 2 == 0 else d + e
                A.i('v_mul_f32 v%d, v%d, v%d' % (dst, d + e, d + 5))
            if j % 2 == 1:
                for e in range(5):
                    A.i('v_cvt_pk_bf16_f32 v%d, v%d, v%d' % (V_OOP + (e * 4 + st) * 4 + j // 2, V_SV + st * 5 + e, d + e))
        if j == 6:
            A.i('s_mul_i32 s%d, s%d, 5' % (S_T0, S_W))
            A.i('s_add_u32 s%d, s%d, s%d' % (S_T0, S_T0, S_WB0))
            A.i('s_add_u32 s%d, s%d, 58' % (S_T0, S_T0))
            A.i('s_mul_i32 s%d, s%d, 5120' % (S_T0, S_T0))
            for t in range(5):
                A.i('buffer_load_dwordx4 %s, v%d, s[%d:%d], s%d offen offset:%d' % (
                    ar(A_HD + 4 * t, 4), V_L16 if t < 4 else V_L16B, S_WF, S_WF + 3, S_T0, 1024 * t if t < 4 else 0),
                    tag=('wo', 4))
    A.stamp(5)
    for e in range(5):
        A.wait_vm(('wo', e))
        C_G(wslot(e) if e < 4 else A_HD, lambda st: vr(V_OOP + (e * 4 + st) * 4, 4), False)
    A.stamp(6)

    A.i('s_lshl_b32 s%d, s%d, 6' % (S_T0, S_W))
    A.i('v_add_u32 v%d, s%d, v%d' % (t0, S_T0, V_L))
    A.i('v_mul_u32_u24 v%d, %d, v%d' % (t0, RSF, t0))
    A.i('v_lshl_add_u32 v%d, v%d, 4, v%d' % (t0, V_G, t0))
    A.i('s_lshl_b32 s%d, s%d, 4' % (S_T0, S_W))
    A.i('s_lshl_b32 s%d, s%d, 6' % (S_T1, S_RB))
    A.i('s_add_u32 s%d, s%d, s%d' % (S_T1, S_T1, S_T0))
    A.i('s_mul_i32 s%d, s%d, 160' % (S_T2, S_CB))
    VR, VO = V_A, V_PQ0
    for i in range(3):
        chunk_decode(A, i, t1, t2, t3)
        A.i('v_add_u32 v%d, s%d, v%d' % (t3, S_T0, t1))
        A.i('v_mul_u32_u24 v%d, %d, v%d' % (t3, RSF, t3))
        A.i('v_lshl_add_u32 v%d, v%d, 5, v%d' % (VR + i, t2, t3))
        A.i('v_add_u32 v%d, s%d, v%d' % (t3, S_T1, t1))
        A.i('v_mul_u32_u24 v%d, 1280, v%d' % (t3, t3))
        A.i('v_lshl_add_u32 v%d, v%d, 4, v%d' % (t3, t2, t3))
        A.i('v_add_u32 v%d, s%d, v%d' % (VO + i, S_T2, t3))
    A.i('v_mov_b32 v%d, 0x%x' % (t3, BIG))
    A.i('v_cmp_gt_u32 vcc, 32, v0')
    A.i('v_cndmask_b32 v%d, v%d, v%d, vcc' % (VO + 2, t3, VO + 2))
    for st in range(4):
        for t in range(5):
            A.i('ds_write_b128 v%d, %s offset:%d' % (t0, vr(acc(st, t), 4), st * 16 * RSF + 64 * t), tag='rw')
    A.wait_all(vm=False)
    A.i('s_barrier')
    R0 = V_ACC
    for i in range(3):
        for src in range(4):
            for h in range(2):
                A.i('ds_read_b128 %s, v%d offset:%d' % (vr(R0 + i * 32 + src * 8 + 4 * h, 4), VR + i,
                                                       src * 64 * RSF + 16 * h), tag=('rr', i))
    for i in range(3):
        A.wait_lg(('rr', i))
        b = R0 + i * 32
        for k in range(8):
            A.i('v_add_f32 v%d, v%d, v%d' % (b + k, b + k, b + 8 + k))
            A.i('v_add_f32 v%d, v%d, v%d' % (b + 16 + k, b + 16 + k, b + 24 + k))
        for k in range(8):
            A.i('v_add_f32 v%d, v%d, v%d' % (b + k, b + k, b + 16 + k))
        for k in range(4):
            A.i('v_cvt_pk_bf16_f32 v%d, v%d, v%d' % (b + 8 + k, b + 2 * k, b + 2 * k + 1))
        A.i('buffer_store_dwordx4 %s, v%d, s[%d:%d], 0 offen' % (vr(b + 8, 4), VO + i, S_OUT, S_OUT + 3), tag='st')
    A.stamp(7)
    A.stamp_end(38, 39, WS_STAMP + 0x80000, S_W, 4)
    A.raw('L_k2_exit:')
    A.i('s_endpgm')
```

```python
import sys, math, os
sys.path.insert(0, 'dev')
from asmlib import *

NAME = 'gated_mix__linear_kernel_hedgehog__geglu_ffn__prompt'
WS_H = 0
WS_PQ = 0x700000
WS_KVP = 0xC00000
WS_KVF = 0xE00000
WS_FL = 0xE20000
WS_G = 0xE30000
WS_STAMP = 0xF00000
WS_WF = 0x1000000
WF_BYTES = 8 * 74 * 5 * 1024
H_BYTES = 2048 * 1728 * 2
PQ_BYTES = 2048 * 1280 * 2
KVP_BYTES = 8 * 32 * 1280 * 4
KVF_BYTES = 32 * 1280 * 2
LOG2E = 1.4426950408889634
BIG = 0x40000000


def f32bits(x):
    import struct
    return struct.unpack('<I', struct.pack('<f', x))[0]


def srd(A, d, lo, hi, nrec, add=0):
    if add:
        A.i('s_add_u32 s%d, s%d, 0x%x' % (d, lo, add))
        A.i('s_addc_u32 s%d, s%d, 0' % (d + 1, hi))
        A.i('s_and_b32 s%d, s%d, 0xffff' % (d + 1, d + 1))
    else:
        A.i('s_mov_b32 s%d, s%d' % (d, lo))
        A.i('s_and_b32 s%d, s%d, 0xffff' % (d + 1, hi))
    A.i('s_mov_b32 s%d, 0x%x' % (d + 2, nrec))
    A.i('s_mov_b32 s%d, 0x20000' % (d + 3))


NBUF = 5
XBUF = 32768
WRING = 3 * XBUF
WPHI = WRING + 5 * 10240
GWL = WPHI + 8192
K1_LDS = 159744
K1_VGPR = 168
PK_OFF, PK_RS = 0, 352
PV_OFF, PV_RS = 90112, 160

S_IDX, S_C, S_RB, S_W = 3, 4, 5, 6
S_X, S_WT, S_O, S_P, S_GW, S_G, S_FL, S_WU = 40, 44, 48, 52, 56, 60, 64, 68
S_T0, S_T1, S_T2, S_CL2E, S_SUB = 72, 73, 74, 98, 99
S_NXT, S_WR, S_KX, S_KW, S_CNT, S_WM, S_WN = 8, 9, 10, 11, 12, 15, 7

V_XA = 1
V_XB = 3
V_WA = 5
V_WB = 8
V_GWA = 7
V_L, V_G, V_R, V_C = 10, 11, 12, 13
V_T = 14
S_XN = 13
V_ACC = 16


def role_params(role):
    gu = role == 'gu'
    kv = role == 'kv'
    P = dict(gu=gu, kv=kv)
    P['nsub'] = 4 if gu else 2
    P['CH'] = 6 if gu else 10
    P['RS'] = P['CH'] * 16
    P['cstride'] = 8 if gu else 40
    P['tstride'] = 32 if gu else 8
    P['rowbytes'] = 3456 if gu else 3840
    P['SUBSZ'] = 32 * P['RS']
    P['BUFSZ'] = P['nsub'] * P['SUBSZ']
    P['NWI'] = P['nsub'] * 32 * P['CH'] // 64
    return P


def k1_loader(A, role):
    P = role_params(role)
    gu, kv = P['gu'], P['kv']
    BUFSZ, CH, rowbytes, NWI = P['BUFSZ'], P['CH'], P['rowbytes'], P['NWI']
    A.label('L_k1_ld_' + role)
    A.hist = []; A.vmq = []; A.lgq = []
    t0, t1, t2, t3 = 14, 15, 1, 2
    A.i('s_setprio 3')
    A.i('s_mov_b32 s%d, 0' % S_WR)
    A.i('s_mov_b32 s%d, 0' % S_CNT)
    A.i('s_and_b32 s%d, s%d, 1' % (S_WM, S_W))
    A.i('s_cmp_ge_u32 s%d, 10' % S_W)
    A.i('s_cbranch_scc1 L_k1_ldw_' + role)

    A.i('v_and_b32 v%d, 7, v0' % t0)
    A.i('v_xor_b32 v%d, v%d, v%d' % (t0, t0, V_G))
    A.i('v_lshrrev_b32 v%d, 3, v0' % t1)
    A.i('v_mul_u32_u24 v%d, 1280, v%d' % (t1, t1))
    A.i('v_lshl_add_u32 v16, v%d, 4, v%d' % (t0, t1))
    A.i('v_xor_b32 v%d, 4, v%d' % (t0, t0))
    A.i('v_lshl_add_u32 v17, v%d, 4, v%d' % (t0, t1))
    A.i('v_add_u32 v17, %d, v17' % (8 * 1280))
    for j in range(2, 8):
        A.i('v_add_u32 v%d, %d, v%d' % (16 + j, (j // 2) * 16 * 1280, 16 + (j & 1)))
    A.i('s_mul_i32 s%d, s%d, %d' % (S_KX, S_RB, 256 * 1280))
    A.i('s_mul_i32 s%d, s%d, %d' % (S_T0, S_WM, 128 * 1280))
    A.i('s_add_u32 s%d, s%d, s%d' % (S_KX, S_KX, S_T0))
    A.i('s_lshl_b32 s%d, s%d, 14' % (S_WN, S_WM))

    def issue_x(h):
        if h == 0:
            A.i('s_add_u32 m0, s%d, s%d' % (S_WR, S_WN))
            A.i('s_mov_b32 s%d, s%d' % (S_T0, S_KX))
        else:
            A.i('s_add_u32 m0, s%d, s%d' % (S_WR, S_WN))
            A.i('s_add_u32 m0, m0, 8192')
            A.i('s_add_u32 s%d, s%d, %d' % (S_T0, S_KX, 64 * 1280))
        for j in range(8):
            A.i('buffer_load_dwordx4 v%d, s[%d:%d], s%d offen lds' % (16 + j, S_X, S_X + 3, S_T0))
            if j < 7:
                A.i('s_add_u32 m0, m0, 1024')
        if h == 1:
            A.i('s_add_u32 s%d, s%d, 128' % (S_KX, S_KX))
            A.i('s_add_u32 s%d, s%d, %d' % (S_WR, S_WR, XBUF))
            A.i('s_cmp_eq_u32 s%d, %d' % (S_WR, 3 * XBUF))
            A.i('s_cselect_b32 s%d, 0, s%d' % (S_WR, S_WR))
    issue_x(0); issue_x(1); issue_x(0); issue_x(1)
    A.i('s_waitcnt vmcnt(16)')
    A.i('s_barrier')
    A.raw('L_k1_ldx_loop_%s:' % role)
    A.i('s_barrier')
    issue_x(0)
    A.i('s_waitcnt vmcnt(8)')
    A.i('s_barrier')
    issue_x(1)
    A.i('s_add_u32 s%d, s%d, 1' % (S_CNT, S_CNT))
    A.i('s_cmp_lt_u32 s%d, 8' % S_CNT)
    A.i('s_cbranch_scc1 L_k1_ldx_loop_%s' % role)
    A.i('s_barrier')
    A.i('s_waitcnt vmcnt(0)')
    A.i('s_barrier')
    A.i('s_barrier')
    A.i('s_barrier')
    A.i('s_endpgm')

    A.raw('L_k1_ldw_%s:' % role)
    A.hist = []
    if gu:
        A.i('s_cmp_eq_u32 s%d, 0' % S_WM)
        A.i('s_cselect_b32 s%d, s26, s28' % S_T0)
        A.i('s_cselect_b32 s%d, s27, s29' % S_T1)
        srd(A, S_WT, S_T0, S_T1, 640 * 3456)
        A.i('s_sub_u32 s%d, s%d, 12' % (S_SUB, S_C))
        A.i('s_mul_i32 s%d, s%d, 192' % (S_T0, S_SUB))
    else:
        srd(A, S_WT, 18, 19, 640 * 3840)
        if role == 'q':
            A.i('s_sub_u32 s%d, s%d, 8' % (S_SUB, S_C))
            A.i('s_mul_i32 s%d, s%d, 320' % (S_T0, S_SUB))
            wpb = 6400
        else:
            A.i('s_mov_b32 s%d, s%d' % (S_SUB, S_C))
            srd(A, S_GW, 32, 33, 1280)
            A.i('s_mul_i32 s%d, s%d, 160' % (S_T0, S_SUB))
            A.i('s_add_u32 s%d, s%d, 1280' % (S_T0, S_T0))
            wpb = 3200
        A.i('s_mul_i32 s%d, s%d, %d' % (S_T2, S_WM, 160 if role == 'q' else 1280))
        A.i('s_add_u32 s%d, s%d, s%d' % (S_T0, S_T0, S_T2))
        A.i('s_mul_i32 s%d, s%d, %d' % (S_T2, S_SUB, wpb))
        A.i('s_add_u32 s%d, s20, s%d' % (S_P, S_T2))
        A.i('s_addc_u32 s%d, s21, 0' % (S_P + 1))
        A.i('s_and_b32 s%d, s%d, 0xffff' % (S_P + 1, S_P + 1))
        A.i('s_mov_b32 s%d, %d' % (S_P + 2, wpb))
        A.i('s_mov_b32 s%d, 0x20000' % (S_P + 3))
    CHL = 12 if gu else 10
    mulc, sh = (171, 11) if gu else (205, 11)
    NI = NWI // 2
    for inst in range(NI):
        A.i('v_add_u32 v%d, %d, v0' % (t0, 64 * inst))
        A.i('v_mul_u32_u24 v%d, %d, v%d' % (t1, mulc, t0))
        A.i('v_lshrrev_b32 v%d, %d, v%d' % (t1, sh, t1))
        A.i('v_mul_u32_u24 v%d, %d, v%d' % (t2, CHL, t1))
        A.i('v_sub_u32 v%d, v%d, v%d' % (t0, t0, t2))
        A.i('v_and_b32 v%d, 4, v%d' % (t3, t1))
        if gu:
            A.i('v_lshrrev_b32 v%d, 1, v%d' % (t2, t3))
            A.i('v_xor_b32 v%d, v%d, v%d' % (t0, t0, t2))
        A.i('v_and_b32 v%d, 0x13, v%d' % (t2, t1))
        A.i('v_lshl_or_b32 v%d, v%d, 1, v%d' % (t2, t3, t2))
        A.i('v_and_b32 v%d, 8, v%d' % (t3, t1))
        A.i('v_lshrrev_b32 v%d, 1, v%d' % (t3, t3))
        A.i('v_or_b32 v%d, v%d, v%d' % (t2, t2, t3))
        A.i('v_mul_u32_u24 v%d, %d, v%d' % (t2, rowbytes, t2))
        A.i('v_add_u32 v%d, s%d, v%d' % (t2, S_T0, t2))
        A.i('v_lshl_add_u32 v%d, v%d, 4, v%d' % (16 + inst, t0, t2))
    A.i('s_mov_b32 s%d, 0' % S_KW)
    A.i('s_mul_i32 s%d, s%d, %d' % (S_WN, S_WM, NI * 1024))
    A.i('s_add_u32 s%d, s%d, %d' % (S_WN, S_WN, WRING))

    def issue_w():
        A.i('s_add_u32 m0, s%d, s%d' % (S_WR, S_WN))
        for j in range(NI):
            A.i('buffer_load_dwordx4 v%d, s[%d:%d], s%d offen lds' % (16 + j, S_WT, S_WT + 3, S_KW))
            if j < NI - 1:
                A.i('s_add_u32 m0, m0, 1024')
        A.i('s_add_u32 s%d, s%d, %d' % (S_KW, S_KW, 32 * rowbytes))
        A.i('s_add_u32 s%d, s%d, %d' % (S_WR, S_WR, BUFSZ))
        A.i('s_cmp_eq_u32 s%d, %d' % (S_WR, NBUF * BUFSZ))
        A.i('s_cselect_b32 s%d, 0, s%d' % (S_WR, S_WR))
    issue_w()
    if not gu:
        A.i('v_lshlrev_b32 v%d, 4, v0' % t0)
        A.i('s_lshl_b32 s%d, s%d, 12' % (S_T1, S_WM))
        A.i('s_add_u32 m0, s%d, %d' % (S_T1, WPHI))
        for j in range(4):
            A.i('buffer_load_dwordx4 v%d, s[%d:%d], s%d offen lds' % (t0, S_P, S_P + 3, S_T1))
            A.i('s_add_u32 m0, m0, 1024')
            A.i('s_add_u32 s%d, s%d, 1024' % (S_T1, S_T1))
        if kv:
            A.i('s_lshl_b32 s%d, s%d, 10' % (S_T1, S_WM))
            A.i('s_add_u32 m0, s%d, %d' % (S_T1, GWL))
            A.i('buffer_load_dwordx4 v%d, s[%d:%d], s%d offen lds' % (t0, S_GW, S_GW + 3, S_T1))
    for i in range(3):
        issue_w()
    n = NI
    A.i('s_waitcnt vmcnt(%d)' % (3 * n))
    A.i('s_barrier')
    A.raw('L_k1_ldw_loop_%s:' % role)
    A.i('s_waitcnt vmcnt(%d)' % (2 * n))
    A.i('s_barrier')
    issue_w()
    A.i('s_add_u32 s%d, s%d, 1' % (S_CNT, S_CNT))
    A.i('s_cmp_lt_u32 s%d, 16' % S_CNT)
    A.i('s_cbranch_scc1 L_k1_ldw_loop_%s' % role)
    A.i('s_waitcnt vmcnt(%d)' % (2 * n))
    A.i('s_barrier')
    A.i('s_waitcnt vmcnt(%d)' % n)
    A.i('s_barrier')
    A.i('s_waitcnt vmcnt(0)')
    A.i('s_barrier')
    A.i('s_barrier')
    A.i('s_endpgm')


def k1_repack(A):
    A.label('L_k1_rp')
    A.hist = []; A.vmq = []; A.lgq = []
    t0, t1, t2, t3, t4, t5 = 14, 15, 1, 2, 3, 4
    VD, VO, VO4, VTR, VST, FR = 16, 21, 26, 31, 32, 36
    srd(A, S_WT, 30, 31, 1728 * 1280)
    srd(A, S_WU, 22, 23, 640 * 1280)
    srd(A, S_O, 38, 39, WF_BYTES, WS_WF)
    for inst in range(5):
        A.i('v_add_u32 v%d, %d, v0' % (t1, 64 * inst))
        A.i('v_mul_u32_u24 v%d, 205, v%d' % (t0, t1))
        A.i('v_lshrrev_b32 v%d, 11, v%d' % (t0, t0))
        A.i('v_mul_u32_u24 v%d, 10, v%d' % (t2, t0))
        A.i('v_sub_u32 v%d, v%d, v%d' % (t1, t1, t2))
        A.i('v_lshlrev_b32 v%d, 4, v%d' % (t1, t1))
        A.i('v_and_b32 v%d, 7, v%d' % (t2, t0))
        A.i('v_and_b32 v%d, 8, v%d' % (t3, t0))
        A.i('v_lshl_or_b32 v%d, v%d, 1, v%d' % (t2, t3, t2))
        A.i('v_and_b32 v%d, 16, v%d' % (t3, t0))
        A.i('v_lshrrev_b32 v%d, 1, v%d' % (t3, t3))
        A.i('v_or_b32 v%d, v%d, v%d' % (t2, t2, t3))
        A.i('v_mul_u32_u24 v%d, 1280, v%d' % (t2, t2))
        A.i('v_add_u32 v%d, v%d, v%d' % (VD + inst, t2, t1))
        A.i('v_bfe_u32 v%d, v%d, 3, 1' % (t3, t0))
        A.i('v_and_b32 v%d, 3, v%d' % (t4, t0))
        A.i('v_lshl_add_u32 v%d, v%d, 2, v%d' % (t3, t3, t4))
        A.i('v_mul_u32_u24 v%d, 20, v%d' % (t3, t3))
        A.i('v_lshrrev_b32 v%d, 4, v%d' % (t4, t0))
        A.i('v_bfe_u32 v%d, v%d, 2, 1' % (t5, t0))
        A.i('v_lshl_add_u32 v%d, v%d, 1, v%d' % (t4, t4, t5))
        A.i('v_lshl_add_u32 v%d, v%d, 2, v%d' % (t5, t4, t3))
        A.i('v_add3_u32 v%d, v%d, v%d, 16' % (t4, t4, t3))
        A.i('v_mul_u32_u24 v%d, 1280, v%d' % (t5, t5))
        A.i('v_mul_u32_u24 v%d, 1280, v%d' % (t4, t4))
        A.i('v_add_u32 v%d, v%d, v%d' % (VO + inst, t5, t1))
        A.i('v_add_u32 v%d, v%d, v%d' % (VO4 + inst, t4, t1))
    A.i('s_mul_i32 s%d, s%d, 5120' % (S_WR, S_W))
    A.i('v_lshrrev_b32 v%d, 1, v%d' % (t0, V_G))
    A.i('v_lshlrev_b32 v%d, 4, v%d' % (t0, t0))
    A.i('v_and_b32 v%d, 1, v%d' % (t1, V_G))
    A.i('v_lshl_add_u32 v%d, v%d, 2, v%d' % (t0, t1, t0))
    A.i('v_add_u32 v%d, v%d, v%d' % (t0, t0, V_R))
    A.i('v_mul_u32_u24 v%d, 160, v%d' % (t0, t0))
    A.i('v_lshl_add_u32 v%d, v%d, 3, v%d' % (t0, V_C, t0))
    A.i('v_add_u32 v%d, s%d, v%d' % (VTR, S_WR, t0))
    A.i('v_lshlrev_b32 v%d, 4, v0' % VST)
    A.i('s_mul_i32 s%d, s%d, 12' % (S_CNT, S_SUB))
    A.i('s_add_u32 s%d, s%d, s%d' % (S_CNT, S_CNT, S_W))
    A.fence()
    A.raw('L_k1_rp_loop:')
    A.i('s_cmp_ge_u32 s%d, 592' % S_CNT)
    A.i('s_cbranch_scc1 L_k1_exit')
    A.i('s_and_b32 s%d, s%d, 7' % (S_T0, S_CNT))
    A.i('s_lshr_b32 s%d, s%d, 3' % (S_T1, S_CNT))
    A.i('s_mul_i32 s%d, s%d, 74' % (S_KX, S_T0))
    A.i('s_add_u32 s%d, s%d, s%d' % (S_KX, S_KX, S_T1))
    A.i('s_mul_i32 s%d, s%d, 5120' % (S_KX, S_KX))
    A.i('s_mul_i32 s%d, s%d, 160' % (S_T0, S_T0))
    A.i('s_mov_b32 m0, s%d' % S_WR)
    A.i('s_cmp_ge_u32 s%d, 54' % S_T1)
    A.i('s_cbranch_scc1 L_k1_rp_wo')

    def dmas(v, sreg, soff):
        for inst in range(5):
            A.i('buffer_load_dwordx4 v%d, s[%d:%d], s%d offen lds' % (v + inst, sreg, sreg + 3, soff))
            if inst < 4:
                A.i('s_add_u32 m0, m0, 1024')
    A.i('s_mul_i32 s%d, s%d, 40960' % (S_T2, S_T1))
    A.i('s_add_u32 s%d, s%d, s%d' % (S_T2, S_T2, S_T0))
    dmas(VD, S_WT, S_T2)
    A.i('s_branch L_k1_rp_go')
    A.raw('L_k1_rp_wo:')
    A.hist = []
    A.i('s_sub_u32 s%d, s%d, 54' % (S_T1, S_T1))
    A.i('s_mul_i32 s%d, s%d, 52' % (S_T2, S_T1))
    A.i('s_lshr_b32 s%d, s%d, 8' % (S_T2, S_T2))
    A.i('s_mul_i32 s%d, s%d, 5' % (S_KW, S_T2))
    A.i('s_sub_u32 s%d, s%d, s%d' % (S_T1, S_T1, S_KW))
    A.i('s_mul_i32 s%d, s%d, %d' % (S_T2, S_T2, 160 * 1280))
    A.i('s_add_u32 s%d, s%d, s%d' % (S_T2, S_T2, S_T0))
    A.i('s_cmp_eq_u32 s%d, 4' % S_T1)
    A.i('s_cbranch_scc1 L_k1_rp_wo4')
    A.i('s_mul_i32 s%d, s%d, 1280' % (S_T1, S_T1))
    A.i('s_add_u32 s%d, s%d, s%d' % (S_T2, S_T2, S_T1))
    dmas(VO, S_WU, S_T2)
    A.i('s_branch L_k1_rp_go')
    A.raw('L_k1_rp_wo4:')
    A.hist = []
    dmas(VO4, S_WU, S_T2)
    A.raw('L_k1_rp_go:')
    A.hist = []
    A.i('s_waitcnt vmcnt(0)')
    for t in range(5):
        for jh in range(2):
            A.i('ds_read_b64_tr_b16 %s, v%d offset:%d' % (vr(FR + 4 * t + 2 * jh, 2), VTR, 8 * jh * 160 + 32 * t))
    A.i('s_waitcnt lgkmcnt(0)')
    for t in range(4):
        A.i('buffer_store_dwordx4 %s, v%d, s[%d:%d], s%d offen offset:%d' % (vr(FR + 4 * t, 4), VST, S_O, S_O + 3, S_KX, 1024 * t))
    A.i('s_add_u32 s%d, s%d, 4096' % (S_KX, S_KX))
    A.i('buffer_store_dwordx4 %s, v%d, s[%d:%d], s%d offen' % (vr(FR + 16, 4), VST, S_O, S_O + 3, S_KX))
    A.i('s_add_u32 s%d, s%d, 192' % (S_CNT, S_CNT))
    A.fence()
    A.i('s_branch L_k1_rp_loop')


def wp_read(A, idx, WPR):
    kap, tp = idx // 5, idx % 5
    rb_ = WPR + tp * 4
    for jh in range(2):
        off = (8 * kap + 4 * jh) * 40 + 8 * tp
        if kap == 2 and jh == 1:
            continue
        A.i('ds_read_b64_tr_b16 %s, v%d offset:%d' % (vr(rb_ + 2 * jh, 2), V_T, off), tag=('wp', idx))


def phi_mfma(A, T, WPR, P, prefetched):
    if not prefetched:
        for idx in range(5):
            wp_read(A, idx, WPR)
    for k in range(10):
        A.i('v_cvt_pk_bf16_f32 v%d, v%d, v%d' % (T + k, T + 2 * k, T + 2 * k + 1))
    A.i('v_mov_b32 v%d, 0' % (T + 10))
    A.i('v_mov_b32 v%d, 0' % (T + 11))
    for idx in range(15):
        kap, tp = idx // 5, idx % 5
        A.wait_lg(('wp', idx))
        c = '0' if kap == 0 else vr(P + 4 * tp, 4)
        A.i('v_mfma_f32_16x16x32_bf16 %s, %s, %s, %s' % (vr(P + 4 * tp, 4), vr(WPR + tp * 4, 4), vr(T + 4 * kap, 4), c))
        if idx + 5 < 15:
            wp_read(A, idx + 5, WPR)


def phi_softmax(A, P, E, OUT):
    mx, mn, s0, s1, s2, s3 = E + 20, E + 21, E + 22, E + 23, E + 24, E + 25
    A.i('v_max3_f32 v%d, v%d, v%d, v%d' % (mx, P, P + 1, P + 2))
    A.i('v_min3_f32 v%d, v%d, v%d, v%d' % (mn, P, P + 1, P + 2))
    A.i('v_max3_f32 v%d, v%d, v%d, v%d' % (s0, P + 3, P + 4, P + 5))
    A.i('v_min3_f32 v%d, v%d, v%d, v%d' % (s1, P + 3, P + 4, P + 5))
    for k in range(6, 20, 4):
        A.i('v_max3_f32 v%d, v%d, v%d, v%d' % (mx, mx, P + k, P + k + 1))
        A.i('v_min3_f32 v%d, v%d, v%d, v%d' % (mn, mn, P + k, P + k + 1))
        if k + 3 < 20:
            A.i('v_max3_f32 v%d, v%d, v%d, v%d' % (s0, s0, P + k + 2, P + k + 3))
            A.i('v_min3_f32 v%d, v%d, v%d, v%d' % (s1, s1, P + k + 2, P + k + 3))
    A.i('v_max_f32 v%d, v%d, v%d' % (mx, mx, s0))
    A.i('v_min_f32 v%d, v%d, v%d' % (mn, mn, s1))
    A.i('v_mul_f32 v%d, s%d, v%d' % (mx, S_CL2E, mx))
    A.i('v_mul_f32 v%d, s%d, v%d' % (mn, S_CL2E, mn))
    for sign in range(2):
        for k in range(20):
            if sign == 0:
                A.i('v_fma_f32 v%d, v%d, s%d, -v%d' % (E + k, P + k, S_CL2E, mx))
            else:
                A.i('v_fma_f32 v%d, -v%d, s%d, v%d' % (E + k, P + k, S_CL2E, mn))
        for k in range(20):
            A.i('v_exp_f32 v%d, v%d' % (E + k, E + k))
        ss = [s0, s1, s2, s3]
        for q in range(4):
            A.i('v_add_f32 v%d, v%d, v%d' % (ss[q], E + q, E + 4 + q))
        for k in range(8, 20, 4):
            for q in range(4):
                A.i('v_add_f32 v%d, v%d, v%d' % (ss[q], ss[q], E + k + q))
        A.i('v_add_f32 v%d, v%d, v%d' % (s0, s0, s1))
        A.i('v_add_f32 v%d, v%d, v%d' % (s2, s2, s3))
        A.i('v_add_f32 v%d, v%d, v%d' % (s0, s0, s2))
        A.i('v_rcp_f32 v%d, v%d' % (s0, s0))
        for k in range(20):
            A.i('v_mul_f32 v%d, v%d, v%d' % (E + k, E + k, s0))
        for k in range(10):
            A.i('v_cvt_pk_bf16_f32 v%d, v%d, v%d' % (OUT + sign * 10 + k, E + 2 * k, E + 2 * k + 1))


def k1_role(A, role):
    PP = role_params(role)
    gu, kv = PP['gu'], PP['kv']
    RS, cstride, tstride, SUBSZ, BUFSZ = (PP[k] for k in ('RS', 'cstride', 'tstride', 'SUBSZ', 'BUFSZ'))
    if gu:
        RS = 192
    NWB = 3 if gu else 1
    NS = 2 if kv else 4
    NT = 10 if kv else (6 if gu else 5)
    LA = 8 if kv else 4
    RING = NT
    nb = NT - LA - 1
    if gu:
        V_XF, V_RING = 112, 144
    elif kv:
        V_ACCG, V_XF, V_GWF, V_RING = 96, 104, 120, 128
    else:
        V_XF, V_RING = 96, 128
    XSET = NS * 4
    A.label('L_k1_' + role)
    A.hist = []; A.vmq = []; A.lgq = []
    A.i('s_cmp_ge_u32 s%d, 8' % S_W)
    A.i('s_cbranch_scc1 L_k1_ld_' + role)
    A.stamp(0)
    t0, t1, t2, t3 = V_T, V_T + 1, V_XF, V_XF + 1
    A.i('v_lshrrev_b32 v%d, 1, v%d' % (t0, V_G))
    A.i('v_lshlrev_b32 v%d, 4, v%d' % (t0, t0))
    A.i('v_and_b32 v%d, 1, v%d' % (t2, V_G))
    A.i('v_lshl_add_u32 v%d, v%d, 2, v%d' % (t0, t2, t0))
    A.i('v_add_u32 v%d, v%d, v%d' % (t0, t0, V_R))
    A.i('v_mul_u32_u24 v%d, %d, v%d' % (t0, RS, t0))
    A.i('v_mul_u32_u24 v%d, %d, v%d' % (t1, cstride, V_C))
    if gu:
        A.i('v_add3_u32 v%d, v%d, v%d, %s' % (t0, t0, t1, '0'))
        A.i('v_add_u32 v%d, %d, v%d' % (t0, WRING, t0))
        for k in range(3):
            A.i('s_cmp_eq_u32 s%d, 0' % S_WN)
            A.i('s_cselect_b32 s%d, %d, %d' % (S_T0, k, [4, 5, 3][k]))
            A.i('v_xor_b32 v%d, s%d, v%d' % (t1, S_T0, t2))
            A.i('v_lshl_add_u32 v%d, v%d, 5, v%d' % (V_WA + k, t1, t0))
    else:
        if kv:
            A.i('s_mov_b32 s%d, %d' % (S_T0, WRING))
        else:
            A.i('s_mul_i32 s%d, s%d, %d' % (S_T0, S_WN, SUBSZ))
            A.i('s_add_u32 s%d, s%d, %d' % (S_T0, S_T0, WRING))
        A.i('v_add3_u32 v%d, v%d, v%d, s%d' % (V_WA, t0, t1, S_T0))
    A.i('v_lshrrev_b32 v%d, 1, v%d' % (t0, V_L))
    A.i('v_xor_b32 v%d, v%d, v%d' % (t1, t0, V_G))
    A.i('v_lshlrev_b32 v%d, 7, v%d' % (t0, V_L))
    A.i('v_lshl_add_u32 v%d, v%d, 4, v%d' % (t0, t1, t0))
    if kv:
        A.i('s_lshl_b32 s%d, s%d, 12' % (S_T0, S_W))
    else:
        A.i('s_lshl_b32 s%d, s%d, 13' % (S_T0, S_WM))
    A.i('v_add_u32 v%d, s%d, v%d' % (V_XA, S_T0, t0))
    A.i('v_xor_b32 v%d, 64, v%d' % (V_XA + 1, V_XA))
    if kv:
        A.i('v_lshlrev_b32 v%d, 4, v%d' % (V_GWA, V_G))
        A.i('v_add_u32 v%d, %d, v%d' % (V_GWA, GWL, V_GWA))
    A.i('v_mov_b32 v%d, v%d' % (V_XB, V_XA))
    for k in range(NWB):
        A.i('v_mov_b32 v%d, v%d' % (V_WB + k, V_WA + k))
    A.i('s_mov_b32 s%d, %d' % (S_NXT, BUFSZ))
    A.i('s_mov_b32 s%d, 0' % S_XN)
    A.i('s_mov_b32 s%d, 0' % S_CNT)
    for k in range(NT * NS * 4 + (8 if kv else 0)):
        A.i('v_mov_b32 v%d, 0' % (V_ACC + k))
    if gu:
        A.i('s_sub_u32 s%d, s%d, 12' % (S_SUB, S_C))
        srd(A, S_O, 38, 39, H_BYTES, WS_H)
    elif kv:
        A.i('s_mov_b32 s%d, s%d' % (S_SUB, S_C))
        srd(A, S_O, 38, 39, KVP_BYTES, WS_KVP)
        srd(A, S_G, 38, 39, 8192, WS_G)
        srd(A, S_FL, 38, 39, 1024, WS_FL)
    else:
        A.i('s_sub_u32 s%d, s%d, 8' % (S_SUB, S_C))
        srd(A, S_O, 38, 39, PQ_BYTES, WS_PQ)
    A.stamp(1)

    def tile_off(n):
        if gu:
            return (n // 3) * 6144
        if kv:
            return (n // 5) * SUBSZ + (n % 5) * tstride
        return n * tstride

    def rd_w(p, n, jh):
        rg = V_RING + (n % RING) * 4
        wb = V_WB + p * NWB + (n % 3 if gu else 0)
        A.i('ds_read_b64_tr_b16 %s, v%d offset:%d' % (vr(rg + 2 * jh, 2), wb, tile_off(n) + 8 * jh * RS),
            tag=('W', p, n))

    def rd_x(p, st):
        A.i('ds_read_b128 %s, v%d offset:%d' % (vr(V_XF + p * XSET + st * 4, 4), V_XB + p, st * 2048), tag=('X', p))

    def rd_gw(p):
        A.i('ds_read_b128 %s, v%d' % (vr(V_GWF + p * 4, 4), V_GWA), tag=('X', p))
        A.i('v_add_u32 v%d, 64, v%d' % (V_GWA, V_GWA))

    def acc(n, st):
        return V_ACC + (st * NT + n) * 4

    def stage(p):
        for n in range(NT):
            fill = []
            if n == nb:
                def bar():
                    if p == 1:
                        A.i('s_add_u32 s%d, s%d, %d' % (S_XN, S_XN, XBUF))
                        A.i('s_cmp_eq_u32 s%d, %d' % (S_XN, 3 * XBUF))
                        A.i('s_cselect_b32 s%d, 0, s%d' % (S_XN, S_XN))
                    A.i('s_barrier')
                    A.i('v_add_u32 v%d, s%d, v%d' % (V_XB + (p ^ 1), S_XN, V_XA + (p ^ 1)))
                    for k in range(NWB):
                        A.i('v_add_u32 v%d, s%d, v%d' % (V_WB + (p ^ 1) * NWB + k, S_NXT, V_WA + k))
                fill.append(bar)
                def adv():
                    A.i('s_add_u32 s%d, s%d, %d' % (S_NXT, S_NXT, BUFSZ))
                    A.i('s_cmp_eq_u32 s%d, %d' % (S_NXT, NBUF * BUFSZ))
                    A.i('s_cselect_b32 s%d, 0, s%d' % (S_NXT, S_NXT))
                fill.append(adv)
            xs = n - (nb + 1)
            if 0 <= xs < 2:
                for st in range(xs * NS // 2, (xs + 1) * NS // 2):
                    fill.append(lambda st=st: rd_x(p ^ 1, st))
            if kv and xs == 2:
                fill.append(lambda: rd_gw(p ^ 1))
            for jh in range(2):
                if n + LA < NT:
                    fill.insert(jh, (lambda jh=jh, n=n: rd_w(p, n + LA, jh)))
                else:
                    fill.append(lambda jh=jh, n=n: rd_w(p ^ 1, n + LA - NT, jh))
            if n == 0:
                A.wait_lg(('X', p))
            A.wait_lg(('W', p, n))
            rg = V_RING + (n % RING) * 4
            mf = []
            for st in range(NS):
                mf.append('v_mfma_f32_16x16x32_bf16 %s, %s, %s, %s' % (vr(acc(n, st), 4), vr(rg, 4),
                                                                     vr(V_XF + p * XSET + st * 4, 4), vr(acc(n, st), 4)))
            if kv and n == 0:
                for st in range(2):
                    mf.append('v_mfma_f32_16x16x32_bf16 %s, %s, %s, %s' % (vr(V_ACCG + st * 4, 4), vr(V_GWF + p * 4, 4),
                                                                         vr(V_XF + p * XSET + st * 4, 4), vr(V_ACCG + st * 4, 4)))
            for k, m in enumerate(mf):
                if not os.environ.get('NOMFMA'):
                    A.i(m)
                rem = len(mf) - k
                take = -(-len(fill) // rem)
                for _ in range(take):
                    fill.pop(0)()

    A.i('s_barrier')
    for st in range(NS):
        rd_x(0, st)
    if kv:
        rd_gw(0)
    for n in range(LA):
        rd_w(0, n, 0); rd_w(0, n, 1)
    A.wait_all(vm=False)
    A.stamp(2)
    saved = (A.lines, A.hist, A.vmq, A.count, A.nops)
    A.lines = []; A.hist = []
    stage(0); stage(1)
    steady = list(A.lgq)
    A.lines, A.hist, A.vmq, A.count, A.nops = saved
    A.lgq = list(steady)
    A.fence()
    A.raw('L_k1_loop_%s:' % role)
    stage(0)
    stage(1)
    assert A.lgq == steady, (A.lgq, steady)
    A.i('s_add_u32 s%d, s%d, 1' % (S_CNT, S_CNT))
    A.i('s_cmp_lt_u32 s%d, 10' % S_CNT)
    A.i('s_cbranch_scc1 L_k1_loop_%s' % role)
    A.fence()
    A.wait_all()
    A.stamp(12)

    A.i('s_lshl_b32 s%d, s%d, 4' % (S_T0, S_RB))
    if kv:
        A.i('s_lshl_b32 s%d, s%d, 1' % (S_T1, S_W))
    else:
        A.i('s_lshl_b32 s%d, s%d, 2' % (S_T1, S_WM))
    A.i('s_add_u32 s%d, s%d, s%d' % (S_T0, S_T0, S_T1))
    if gu:
        C0 = -2.0 * math.sqrt(2.0 / math.pi) * LOG2E
        C1 = C0 * 0.044715
        vC0, vO = t0, t1
        A.i('v_mov_b32 v%d, 0x%08x' % (vC0, f32bits(C0)))
        A.i('s_mov_b32 s%d, 0x%08x' % (S_CL2E, f32bits(C1)))
        A.i('s_mul_i32 s%d, s%d, 54' % (S_T0, S_T0))
        A.i('s_mul_i32 s%d, s%d, 3' % (S_T1, S_SUB))
        A.i('s_add_u32 s%d, s%d, s%d' % (S_T0, S_T0, S_T1))
        A.i('s_lshl_b32 s%d, s%d, 10' % (S_T0, S_T0))
        A.i('s_lshl_b32 s%d, s%d, 11' % (S_T1, S_WN))
        A.i('s_add_u32 s%d, s%d, s%d' % (S_T1, S_T1, S_T0))
        A.i('s_lshl_b32 s%d, s%d, 3' % (S_T2, S_WN))
        A.i('s_add_u32 s%d, s%d, s%d' % (S_T2, S_T2, S_T0))
        A.i('s_add_u32 s%d, s%d, 1024' % (S_T2, S_T2))
        A.i('v_lshlrev_b32 v%d, 4, v0' % vO)
        for st in range(4):
            e = 112 + (st % 2) * 28
            els = [(acc(b, st) + r, acc(3 + b, st) + r) for b in range(3) for r in range(4)]
            for j, (x, u) in enumerate(els):
                A.i('v_mul_f32 v%d, v%d, v%d' % (e + j, x, x))
            for j, (x, u) in enumerate(els):
                A.i('v_fma_f32 v%d, v%d, s%d, v%d' % (e + j, e + j, S_CL2E, vC0))
            for j, (x, u) in enumerate(els):
                A.i('v_mul_f32 v%d, v%d, v%d' % (e + j, e + j, x))
            for j, (x, u) in enumerate(els):
                A.i('v_exp_f32 v%d, v%d' % (e + j, e + j))
            for j, (x, u) in enumerate(els):
                A.i('v_mul_f32 v%d, v%d, v%d' % (x, x, u))
            for j, (x, u) in enumerate(els):
                A.i('v_add_f32 v%d, 1.0, v%d' % (e + j, e + j))
            for j, (x, u) in enumerate(els):
                A.i('v_rcp_f32 v%d, v%d' % (e + j, e + j))
            for j, (x, u) in enumerate(els):
                A.i('v_mul_f32 v%d, v%d, v%d' % (e + j, e + j, x))
            for j in range(6):
                A.i('v_cvt_pk_bf16_f32 v%d, v%d, v%d' % (e + 12 + j, e + 2 * j, e + 2 * j + 1))
            A.i('buffer_store_dwordx4 %s, v%d, s[%d:%d], s%d offen' % (vr(e + 12, 4), vO, S_O, S_O + 3, S_T1), tag='st')
            A.i('buffer_store_dwordx2 %s, v%d, s[%d:%d], s%d offen' % (vr(e + 16, 2), vO, S_O, S_O + 3, S_T2), tag='st')
            if st < 3:
                A.i('s_add_u32 s%d, s%d, %d' % (S_T1, S_T1, 54 * 1024))
                A.i('s_add_u32 s%d, s%d, %d' % (S_T2, S_T2, 54 * 1024))
        A.stamp(13)
        A.stamp_end(38, 39, WS_STAMP, S_W, 8)
        A.i('s_endpgm')
        return

    WPR, P, E, MISC = 96, 116, 136, 162
    t2, t3 = 1, 2
    A.i('s_mov_b32 s%d, 0x%08x' % (S_CL2E, f32bits(LOG2E)))
    if kv:
        vrow = MISC
        A.i('s_lshl_b32 s%d, s%d, 4' % (S_T0, S_T0))
        A.i('v_add_u32 v%d, s%d, v%d' % (vrow, S_T0, V_L))
        for st in range(2):
            a = V_ACCG + st * 4
            A.i('v_mul_f32 v%d, s%d, v%d' % (MISC + 1 + st, S_CL2E, a))
            A.i('v_exp_f32 v%d, -v%d' % (MISC + 1 + st, MISC + 1 + st))
            A.i('v_add_f32 v%d, 1.0, v%d' % (MISC + 1 + st, MISC + 1 + st))
            A.i('v_rcp_f32 v%d, v%d' % (MISC + 1 + st, MISC + 1 + st))
        A.i('v_lshlrev_b32 v%d, 2, v%d' % (t1, vrow))
        A.i('v_mov_b32 v%d, 0x%x' % (t2, BIG))
        A.i('v_cmp_eq_u32 vcc, 0, v%d' % V_G)
        A.i('v_cndmask_b32 v%d, v%d, v%d, vcc' % (t1, t2, t1))
        A.i('s_cmp_eq_u32 s%d, 0' % S_SUB)
        A.i('s_cselect_b32 s%d, 0, 0x%x' % (S_T0, BIG))
        A.i('buffer_store_dword v%d, v%d, s[%d:%d], s%d offen' % (MISC + 1, t1, S_G, S_G + 3, S_T0), tag='st')
        A.i('buffer_store_dword v%d, v%d, s[%d:%d], s%d offen offset:64' % (MISC + 2, t1, S_G, S_G + 3, S_T0), tag='st')
        A.i('s_or_b32 s%d, s%d, s%d' % (S_T0, S_IDX, S_W))
        A.i('s_cmp_eq_u32 s%d, 0' % S_T0)
        A.i('s_cselect_b32 s%d, 0, 0x%x' % (S_T0, BIG))
        for k in range(4):
            A.i('v_mov_b32 v%d, 0' % (E + k))
        A.i('v_lshlrev_b32 v%d, 4, v0' % t1)
        A.i('buffer_store_dwordx4 %s, v%d, s[%d:%d], s%d offen' % (vr(E, 4), t1, S_FL, S_FL + 3, S_T0), tag='st')
    A.i('v_mul_u32_u24 v%d, 800, v%d' % (t0, V_G))
    A.i('v_mul_u32_u24 v%d, 40, v%d' % (t1, V_R))
    if kv:
        A.i('s_mov_b32 s%d, %d' % (S_T1, WPHI))
    else:
        A.i('s_mul_i32 s%d, s%d, 3200' % (S_T1, S_WN))
        A.i('s_add_u32 s%d, s%d, %d' % (S_T1, S_T1, WPHI))
    A.i('v_add3_u32 v%d, v%d, v%d, s%d' % (t0, t0, t1, S_T1))
    A.i('v_mov_b32 v%d, %d' % (t1, WPHI + 6400))
    A.i('v_cmp_eq_u32 vcc, v%d, v%d' % (V_C, V_G))
    A.i('v_cndmask_b32 v%d, v%d, v%d, vcc' % (V_T, t1, t0))
    for idx in range(5):
        wp_read(A, idx, WPR)
    if role == 'q':
        vO = MISC
        A.i('v_mul_u32_u24 v%d, 1280, v%d' % (vO, V_G))
        A.i('v_lshl_add_u32 v%d, v%d, 4, v%d' % (vO, V_L, vO))
        A.i('s_lshl_b32 s%d, s%d, 5' % (S_T0, S_T0))
        A.i('s_lshl_b32 s%d, s%d, 3' % (S_T1, S_SUB))
        A.i('s_add_u32 s%d, s%d, s%d' % (S_T0, S_T0, S_T1))
        A.i('s_lshl_b32 s%d, s%d, 2' % (S_T1, S_WN))
        A.i('s_add_u32 s%d, s%d, s%d' % (S_T0, S_T0, S_T1))
        A.i('s_mul_i32 s%d, s%d, 1280' % (S_T0, S_T0))
        for st in range(4):
            T = acc(0, st)
            phi_mfma(A, T, WPR, P, True)
            if st < 3:
                for idx in range(5):
                    wp_read(A, idx, WPR)
            phi_softmax(A, P, E, T)
            for k in range(5):
                A.i('buffer_store_dwordx4 %s, v%d, s[%d:%d], s%d offen offset:%d' % (
                    vr(T + 4 * k, 4), vO, S_O, S_O + 3, S_T0, 256 * k), tag='st')
            if st < 3:
                A.i('s_add_u32 s%d, s%d, %d' % (S_T0, S_T0, 32 * 1280))
        A.stamp(13)
        A.stamp_end(38, 39, WS_STAMP, S_W, 8)
        A.i('s_endpgm')
        return

    A.i('s_barrier')
    vPK, vPV = MISC + 3, MISC + 4
    A.i('s_lshl_b32 s%d, s%d, 5' % (S_T0, S_W))
    A.i('v_add_u32 v%d, s%d, v%d' % (t1, S_T0, V_L))
    A.i('v_mul_u32_u24 v%d, %d, v%d' % (vPK, PK_RS, t1))
    A.i('v_mul_u32_u24 v%d, 80, v%d' % (t2, V_G))
    A.i('v_add_u32 v%d, v%d, v%d' % (vPK, vPK, t2))
    A.i('v_mul_u32_u24 v%d, %d, v%d' % (vPV, PV_RS, t1))
    A.i('v_mul_u32_u24 v%d, 40, v%d' % (t2, V_G))
    A.i('v_add3_u32 v%d, v%d, v%d, %s' % (vPV, vPV, t2, '0'))
    A.i('v_add_u32 v%d, %d, v%d' % (vPV, PV_OFF, vPV))
    for st in range(2):
        a = acc(5, st)
        for k in range(10):
            A.i('v_cvt_pk_bf16_f32 v%d, v%d, v%d' % (a + k, a + 2 * k, a + 2 * k + 1))
        for t in range(5):
            A.i('ds_write_b64 v%d, %s offset:%d' % (vPV, vr(a + 2 * t, 2), st * 16 * PV_RS + 8 * t), tag='lw')
    for st in range(2):
        T = acc(0, st)
        phi_mfma(A, T, WPR, P, True)
        if st < 1:
            for idx in range(5):
                wp_read(A, idx, WPR)
        phi_softmax(A, P, E, T)
        for k in range(5):
            A.i('ds_write_b128 v%d, %s offset:%d' % (vPK, vr(T + 4 * k, 4), st * 16 * PK_RS + 16 * k), tag='lw')
    A.wait_all(vm=False)
    A.i('s_barrier')
    vA0, vA1, vB = V_T + 1, 1, 2
    A.i('v_lshrrev_b32 v%d, 1, v%d' % (t0, V_G))
    A.i('v_lshlrev_b32 v%d, 4, v%d' % (t0, t0))
    A.i('v_and_b32 v%d, 1, v%d' % (vA1, V_G))
    A.i('v_lshl_add_u32 v%d, v%d, 2, v%d' % (t0, vA1, t0))
    A.i('v_add_u32 v%d, v%d, v%d' % (t0, t0, V_R))
    A.i('s_lshr_b32 s%d, s%d, 1' % (S_T0, S_W))
    A.i('s_and_b32 s%d, s%d, 1' % (S_T1, S_W))
    A.i('s_mul_i32 s%d, s%d, 80' % (S_T2, S_T0))
    A.i('v_mul_u32_u24 v%d, %d, v%d' % (vA0, PK_RS, t0))
    A.i('v_lshl_add_u32 v%d, v%d, 3, v%d' % (vA0, V_C, vA0))
    A.i('v_add_u32 v%d, s%d, v%d' % (vA0, S_T2, vA0))
    A.i('v_add_u32 v%d, %d, v%d' % (vA1, 128 * PK_RS, vA0))
    A.i('s_mul_i32 s%d, s%d, 40' % (S_T2, S_T0))
    A.i('s_lshl_b32 s%d, s%d, 5' % (S_KX, S_T1))
    A.i('s_add_u32 s%d, s%d, s%d' % (S_T2, S_T2, S_KX))
    A.i('s_add_u32 s%d, s%d, %d' % (S_T2, S_T2, PV_OFF))
    A.i('v_mul_u32_u24 v%d, %d, v%d' % (vB, PV_RS, t0))
    A.i('v_lshl_add_u32 v%d, v%d, 3, v%d' % (vB, V_C, vB))
    A.i('v_add_u32 v%d, s%d, v%d' % (vB, S_T2, vB))
    ONES, DK, DZ, FR = 16, 20, 32, 44
    for k in range(4):
        A.i('v_mov_b32 v%d, 0x3f803f80' % (ONES + k))

    def kv_reads(kk):
        f = FR + (kk % 4) * 16
        for mt in range(3):
            for jh in range(2):
                A.i('ds_read_b64_tr_b16 %s, v%d offset:%d' % (
                    vr(f + 4 * mt + 2 * jh, 2), vA0 if kk < 4 else vA1,
                    (32 * (kk % 4) + 8 * jh) * PK_RS + 32 * mt), tag=('kf', kk))
        for jh in range(2):
            A.i('ds_read_b64_tr_b16 %s, v%d offset:%d' % (vr(f + 12 + 2 * jh, 2), vB, (32 * kk + 8 * jh) * PV_RS),
                tag=('kf', kk))

    def kv_mfma(k2):
        A.wait_lg(('kf', k2))
        f2 = FR + (k2 % 4) * 16
        for mt in range(3):
            c = '0' if k2 == 0 else vr(DK + 4 * mt, 4)
            A.i('v_mfma_f32_16x16x32_bf16 %s, %s, %s, %s' % (vr(DK + 4 * mt, 4), vr(f2 + 4 * mt, 4), vr(f2 + 12, 4), c))
            c = '0' if k2 == 0 else vr(DZ + 4 * mt, 4)
            A.i('v_mfma_f32_16x16x32_bf16 %s, %s, %s, %s' % (vr(DZ + 4 * mt, 4), vr(f2 + 4 * mt, 4), vr(ONES, 4), c))

    kv_reads(0); kv_reads(1)
    va, vb, vza, vzb, vbig, vm, vj = 112, 113, 114, 115, 116, 117, 118
    A.i('s_lshl_b32 s%d, s%d, 5' % (S_T2, S_RB))
    A.i('s_lshl_b32 s%d, s%d, 2' % (S_KX, S_SUB))
    A.i('s_add_u32 s%d, s%d, s%d' % (S_T2, S_T2, S_KX))
    A.i('s_add_u32 s%d, s%d, s%d' % (S_T2, S_T2, S_T0))
    A.i('s_mul_i32 s%d, s%d, 5120' % (S_T2, S_T2))
    A.i('v_mov_b32 v%d, 0x%x' % (vbig, BIG))
    A.i('s_lshl_b32 s%d, s%d, 1' % (S_KX, S_T1))
    A.i('v_lshlrev_b32 v%d, s%d, v%d' % (vm, S_KX, V_L))
    A.i('v_and_b32 v%d, 1, v%d' % (vj, V_G))
    A.i('v_lshlrev_b32 v%d, 2, v%d' % (vj, vj))
    A.i('v_lshrrev_b32 v%d, 1, v%d' % (t0, V_G))
    A.i('v_lshl_add_u32 v%d, v%d, 7, v%d' % (t0, t0, vj))
    A.i('s_lshl_b32 s%d, s%d, 9' % (S_KX, S_T1))
    A.i('v_lshl_add_u32 v%d, v%d, 3, v%d' % (va, vm, t0))
    A.i('v_add_u32 v%d, s%d, v%d' % (va, S_KX, va))
    A.i('v_lshlrev_b32 v%d, 2, v%d' % (va, va))
    A.i('s_lshl_b32 s%d, s%d, 7' % (S_KX, S_T1))
    A.i('s_add_u32 s%d, s%d, 1024' % (S_KX, S_KX))
    A.i('v_lshl_add_u32 v%d, v%d, 3, v%d' % (vb, vm, vj))
    A.i('v_add_u32 v%d, s%d, v%d' % (vb, S_KX, vb))
    A.i('v_lshlrev_b32 v%d, 2, v%d' % (vb, vb))
    A.i('v_cmp_gt_u32 vcc, 16, v%d' % vm)
    A.i('v_cndmask_b32 v%d, v%d, v%d, vcc' % (va, vbig, va))
    A.i('v_cndmask_b32 v%d, v%d, v%d, vcc' % (vb, vbig, vb))
    A.i('v_cmp_gt_u32 vcc, 2, v%d' % V_G)
    A.i('v_cndmask_b32 v%d, v%d, v%d, vcc' % (vb, vbig, vb))
    A.i('v_lshl_add_u32 v%d, v%d, 3, v%d' % (vza, V_L, t0))
    A.i('v_add_u32 v%d, 512, v%d' % (vza, vza))
    A.i('v_lshlrev_b32 v%d, 2, v%d' % (vza, vza))
    A.i('v_lshl_add_u32 v%d, v%d, 3, v%d' % (vzb, V_L, vj))
    A.i('v_add_u32 v%d, 1152, v%d' % (vzb, vzb))
    A.i('v_lshlrev_b32 v%d, 2, v%d' % (vzb, vzb))
    A.i('v_cndmask_b32 v%d, v%d, v%d, vcc' % (vzb, vbig, vzb))
    A.i('v_cmp_eq_u32 vcc, 1, v%d' % V_C)
    A.i('v_cndmask_b32 v%d, v%d, v%d, vcc' % (vza, vbig, vza))
    A.i('v_cndmask_b32 v%d, v%d, v%d, vcc' % (vzb, vbig, vzb))
    A.i('s_cmp_eq_u32 s%d, 1' % S_T1)
    A.i('s_cselect_b32 s%d, s%d, 0x%x' % (S_KX, S_T2, BIG))
    for kk in range(8):
        if kk + 2 < 8:
            kv_reads(kk + 2)
        kv_mfma(kk)
    for mt in range(3):
        A.i('buffer_store_dwordx4 %s, v%d, s[%d:%d], s%d offen offset:%d' % (
            vr(DK + 4 * mt, 4), va if mt < 2 else vb, S_O, S_O + 3, S_T2, 1024 * mt if mt < 2 else 0), tag='st')
        A.i('buffer_store_dwordx4 %s, v%d, s[%d:%d], s%d offen offset:%d' % (
            vr(DZ + 4 * mt, 4), vza if mt < 2 else vzb, S_O, S_O + 3, S_KX, 1024 * mt if mt < 2 else 0), tag='st')
    A.stamp(13)
    A.stamp_end(38, 39, WS_STAMP, S_W, 8)
    A.i('s_endpgm')


def k1(A):
    A.raw('.globl k1_kernel\n.p2align 8\n.type k1_kernel,@function\nk1_kernel:')
    A.i('s_cmp_ge_u32 s2, 256')
    A.i('s_cbranch_scc1 L_k1_exit')
    A.i('s_load_dwordx16 s[16:31], s[0:1], 0')
    A.i('s_load_dwordx8 s[32:39], s[0:1], 64')
    A.i('s_and_b32 s%d, s2, 7' % S_T0)
    A.i('s_lshr_b32 s%d, s2, 3' % S_T1)
    A.i('s_mul_i32 s3, s%d, 30' % S_T0)
    A.i('s_add_u32 s%d, s3, s%d' % (S_IDX, S_T1))
    A.i('s_lshr_b32 s%d, s%d, 3' % (S_C, S_IDX))
    A.i('s_and_b32 s%d, s%d, 7' % (S_RB, S_IDX))
    A.i('s_lshl_b32 s%d, s%d, 1' % (S_SUB, S_T0))
    A.i('s_add_u32 s%d, s%d, s%d' % (S_SUB, S_SUB, S_T1))
    A.i('s_sub_u32 s%d, s%d, 30' % (S_SUB, S_SUB))
    A.i('v_lshrrev_b32 v1, 6, v0')
    A.i('v_readfirstlane_b32 s%d, v1' % S_W)
    A.i('v_and_b32 v0, 63, v0')
    A.i('v_and_b32 v%d, 15, v0' % V_L)
    A.i('v_lshrrev_b32 v%d, 4, v0' % V_G)
    A.i('v_bfe_u32 v%d, v0, 2, 2' % V_R)
    A.i('v_and_b32 v%d, 3, v0' % V_C)
    A.i('s_and_b32 s%d, s%d, 3' % (S_WM, S_W))
    A.i('s_lshr_b32 s%d, s%d, 2' % (S_WN, S_W))
    A.i('s_waitcnt lgkmcnt(0)')
    srd(A, S_X, 16, 17, 2048 * 1280)
    A.fence()
    A.i('s_cmp_ge_u32 s%d, 30' % S_T1)
    A.i('s_cbranch_scc1 L_k1_rp')
    A.i('s_cmp_lt_u32 s%d, 8' % S_C)
    A.i('s_cbranch_scc1 L_k1_kv')
    A.i('s_cmp_lt_u32 s%d, 12' % S_C)
    A.i('s_cbranch_scc1 L_k1_q')
    for role in ('gu', 'q', 'kv'):
        k1_role(A, role)
        k1_loader(A, role)
    k1_repack(A)
    A.raw('L_k1_exit:')
    A.i('s_endpgm')


def kd(name, vgpr, accum, sgpr=102):
    return '''.amdhsa_kernel %s
  .amdhsa_next_free_vgpr %d
  .amdhsa_next_free_sgpr %d
  .amdhsa_accum_offset %d
  .amdhsa_group_segment_fixed_size 0
  .amdhsa_kernarg_size 96
  .amdhsa_user_sgpr_count 2
  .amdhsa_user_sgpr_kernarg_segment_ptr 1
  .amdhsa_system_sgpr_workgroup_id_x 1
.end_amdhsa_kernel
''' % (name, vgpr, sgpr, accum)


if __name__ == '__main__':
    out = sys.argv[1] if len(sys.argv) > 1 else 'k.s'
    only1 = len(sys.argv) > 2 and sys.argv[2] == 'k1'
    A = Asm()
    st = os.environ.get('STAMP', '')
    if '1' in st:
        A.stamp_on = True
        A.stamp_v = 19
        A.stamp_s = 76
    A.raw('; @launch kernel=k1_kernel grid=(256,1,1) block=(768,1,1) lds=%d' % K1_LDS)
    if not only1:
        from gen2 import k2, K2_LDS, K2_VGPR, K2_ACC
        A.raw('; @launch kernel=k2_kernel grid=(256,1,1) block=(256,1,1) lds=%d' % K2_LDS)
    A.raw('.amdgcn_target "amdgcn-amd-amdhsa--gfx950"\n.text')
    k1(A)
    if not only1:
        A.hist = []; A.vmq = []; A.lgq = []
        A.stamp_on = '2' in st
        A.stamp_v = 255
        A.stamp_s = None
        k2(A)
    A.raw('.section .rodata,"a"\n.p2align 6')
    A.raw(kd('k1_kernel', K1_VGPR, K1_VGPR))
    if not only1:
        A.raw('.p2align 6')
        A.raw(kd('k2_kernel', K2_VGPR, K2_ACC))
    open(out, 'w').write(A.text())
    print('instrs', A.count, 'nops', A.nops)
```

```python
import re

TRANS = {'v_exp_f32', 'v_log_f32', 'v_rcp_f32', 'v_rsq_f32', 'v_sqrt_f32', 'v_sin_f32', 'v_cos_f32',
         'v_rcp_iflag_f32'}

_reg_re = re.compile(r'^(-|abs\()?\|?([vas])(\d+)\)?\|?$')
_rng_re = re.compile(r'^(-)?([vas])\[(\d+):(\d+)\]$')


def regs_of(op):
    op = op.strip()
    m = _rng_re.match(op)
    if m:
        return [(m.group(2), i) for i in range(int(m.group(3)), int(m.group(4)) + 1)]
    m = _reg_re.match(op)
    if m:
        return [(m.group(2), int(m.group(3)))]
    if op in ('vcc', 'exec', 'm0', 'scc'):
        return [(op, 0)]
    if op in ('vcc_lo', 'vcc_hi'):
        return [('vcc', 0)]
    return []


def split_ops(s):
    out, depth, cur = [], 0, ''
    for ch in s:
        if ch == '[' or ch == '(':
            depth += 1
        elif ch == ']' or ch == ')':
            depth -= 1
        if ch == ',' and depth == 0:
            out.append(cur.strip())
            cur = ''
        else:
            cur += ch
    if cur.strip():
        out.append(cur.strip())
    return out


class Ins:
    __slots__ = ('mn', 'cls', 'w', 'r', 'srcc', 'states', 'text', 'wide_store_data', 'lds_dma', 'dpp', 'ab')


def classify(text):
    t = text.split(';')[0].strip()
    parts = t.split(None, 1)
    mn = parts[0]
    rest = parts[1] if len(parts) > 1 else ''
    ops_raw = split_ops(rest)
    mods = []
    if ops_raw:
        last = ops_raw[-1].split()
        ops_raw[-1] = last[0]
        mods = last[1:]
    I = Ins()
    I.mn = mn
    I.text = text
    I.states = 1
    I.srcc = []
    I.ab = []
    I.wide_store_data = []
    I.lds_dma = False
    I.dpp = any(m.startswith(('quad_perm', 'row_', 'wave_')) for m in mods) or mn.endswith('_dpp')
    w, r = [], []
    if mn == 's_nop':
        I.cls = 'nop'
        I.states = int(ops_raw[0], 0) + 1
    elif mn.startswith('v_mfma'):
        I.cls = 'mfma'
        w = regs_of(ops_raw[0])
        I.ab = regs_of(ops_raw[1]) + regs_of(ops_raw[2])
        I.srcc = regs_of(ops_raw[3])
        r = I.ab + I.srcc
    elif mn.startswith('v_'):
        I.cls = 'valu'
        if mn.startswith('v_cmp'):
            w = regs_of(ops_raw[0])
            for o in ops_raw[1:]:
                r += regs_of(o)
        elif mn in ('v_add_co_u32', 'v_addc_co_u32', 'v_sub_co_u32', 'v_subb_co_u32', 'v_mad_u64_u32'):
            w = regs_of(ops_raw[0]) + regs_of(ops_raw[1])
            for o in ops_raw[2:]:
                r += regs_of(o)
        elif mn.startswith('v_permlane') and 'swap' in mn:
            w = regs_of(ops_raw[0]) + regs_of(ops_raw[1])
            r = list(w)
        else:
            w = regs_of(ops_raw[0])
            for o in ops_raw[1:]:
                r += regs_of(o)
            if mn.startswith(('v_fmac', 'v_pk_fmac', 'v_dot2c', 'v_writelane')):
                r += w
            if mn == 'v_cndmask_b32' and len(ops_raw) == 3:
                r += [('vcc', 0)]
    elif mn.startswith(('buffer_inv', 'buffer_wbl2')):
        I.cls = 'vmem'
    elif mn.startswith(('buffer_load', 'global_load')):
        if 'lds' in mods or mn.startswith('global_load_lds'):
            I.cls = 'vmem'
            I.lds_dma = True
            for o in ops_raw:
                r += regs_of(o)
            r += [('m0', 0)]
        else:
            I.cls = 'vmem'
            w = regs_of(ops_raw[0])
            for o in ops_raw[1:]:
                r += regs_of(o)
    elif mn.startswith(('buffer_store', 'global_store', 'buffer_atomic', 'global_atomic')):
        I.cls = 'vmem'
        for o in ops_raw:
            r += regs_of(o)
        if mn.endswith(('x3', 'x4')):
            di = 0 if mn.startswith('buffer') else 1
            I.wide_store_data = regs_of(ops_raw[di])
        if 'atomic' in mn and 'sc0' in mods:
            w = regs_of(ops_raw[0])
    elif mn.startswith('ds_read') or mn.startswith('ds_bpermute') or mn.startswith('ds_permute') or mn.startswith('ds_swizzle'):
        I.cls = 'ds'
        w = regs_of(ops_raw[0])
        for o in ops_raw[1:]:
            r += regs_of(o)
    elif mn.startswith('ds_'):
        I.cls = 'ds'
        for o in ops_raw:
            r += regs_of(o)
    elif mn.startswith(('s_load', 's_buffer_load', 's_memtime', 's_memrealtime')):
        I.cls = 'smem'
        w = regs_of(ops_raw[0])
        for o in ops_raw[1:]:
            r += regs_of(o)
    elif mn.startswith('s_'):
        I.cls = 'salu'
        if mn.startswith(('s_cmp', 's_waitcnt', 's_barrier', 's_branch', 's_cbranch', 's_endpgm', 's_sleep',
                          's_setprio', 's_bitcmp')):
            for o in ops_raw:
                r += regs_of(o)
        else:
            w = regs_of(ops_raw[0])
            for o in ops_raw[1:]:
                r += regs_of(o)
    else:
        raise ValueError('unknown instr: ' + text)
    I.w = set(w)
    I.r = set(r)
    I.srcc = set(I.srcc)
    I.ab = set(I.ab)
    I.wide_store_data = set(I.wide_store_data)
    return I


def need_states(P, C):
    n = 0
    vw = {x for x in P.w if x[0] in 'va'}
    sw = {x for x in P.w if x[0] == 's' or x[0] == 'vcc'}
    if P.cls == 'valu':
        if C.cls == 'mfma' and (vw & C.r):
            n = max(n, 2)
        if P.mn in TRANS and C.cls == 'valu' and C.mn not in TRANS and (vw & C.r):
            n = max(n, 1)
        if P.mn in TRANS and C.cls in ('vmem', 'ds') and (vw & C.r):
            n = max(n, 1)
        if sw:
            if C.cls == 'valu' and (sw & C.r):
                n = max(n, 4 if C.mn.startswith(('v_readlane', 'v_writelane')) else 2)
            if C.cls == 'vmem' and (sw & C.r):
                n = max(n, 5)
            if C.cls in ('salu', 'smem') and (sw & C.r):
                n = max(n, 1)
        if C.cls == 'valu' and C.mn.startswith(('v_readfirstlane', 'v_readlane')) and (vw & C.r):
            n = max(n, 1)
        if C.cls == 'valu' and (C.dpp or C.mn.startswith('v_permlane')) and (vw & C.r):
            n = max(n, 2)
    if P.cls == 'mfma':
        passes8 = '32x32' in P.mn
        if C.cls == 'mfma':
            if vw & C.ab:
                n = max(n, 12 if passes8 else 8)
            if vw & C.srcc:
                if P.w == C.srcc and P.mn == C.mn:
                    pass
                else:
                    n = max(n, 10 if passes8 else 6)
            elif vw & C.w:
                n = max(n, 10 if passes8 else 6)
        elif C.cls in ('valu', 'vmem', 'ds'):
            if vw & (C.r | C.w):
                n = max(n, 12 if passes8 else 8)
            if C.cls == 'valu' and (P.srcc & C.w):
                n = max(n, 7 if passes8 else 3)
    if P.cls == 'salu' and ('m0', 0) in P.w and C.lds_dma:
        n = max(n, 1)
    if P.wide_store_data and (P.wide_store_data & C.w):
        n = max(n, 2)
    return n


class Asm:
    def __init__(self):
        self.lines = []
        self.hist = []
        self.vmq = []
        self.lgq = []
        self.nops = 0
        self.count = 0

    def raw(self, text):
        self.lines.append(text)

    def comment(self, text):
        self.lines.append('    ; ' + text)

    def label(self, name):
        self.lines.append(name + ':')

    def fence(self):
        self.i('s_nop 7')
        self.i('s_nop 3')
        self.hist = []

    def i(self, text, tag=None):
        I = classify(text)
        dist = 0
        need = 0
        for P in reversed(self.hist):
            n = need_states(P, I)
            if n > dist:
                need = max(need, n - dist)
            dist += P.states
            if dist >= 20:
                break
        while need > 0:
            k = min(need, 16)
            N = classify('s_nop %d' % (k - 1))
            self.lines.append('    s_nop %d' % (k - 1))
            self.hist.append(N)
            self.nops += 1
            need -= k
        self.lines.append('    ' + text)
        self.hist.append(I)
        if len(self.hist) > 64:
            self.hist = self.hist[-32:]
        self.count += 1
        if I.cls == 'vmem':
            self.vmq.append(tag)
        elif I.cls == 'ds':
            self.lgq.append(tag)
        return I

    def wait_vm(self, tag):
        tags = tag if isinstance(tag, (list, set)) else [tag]
        idx = -1
        for k, t in enumerate(self.vmq):
            if t in tags:
                idx = k
        if idx < 0:
            return
        n = len(self.vmq) - 1 - idx
        if n > 63:
            n = 63
            idx = len(self.vmq) - 1 - 63
        self.i('s_waitcnt vmcnt(%d)' % n)
        self.vmq = self.vmq[idx + 1:]

    def wait_lg(self, tag):
        tags = tag if isinstance(tag, (list, set)) else [tag]
        idx = -1
        for k, t in enumerate(self.lgq):
            if t in tags:
                idx = k
        if idx < 0:
            return
        n = len(self.lgq) - 1 - idx
        if n > 15:
            n = 15
            idx = len(self.lgq) - 1 - 15
        self.i('s_waitcnt lgkmcnt(%d)' % n)
        self.lgq = self.lgq[idx + 1:]

    def wait_all(self, vm=True, lg=True):
        s = []
        if vm:
            s.append('vmcnt(0)')
            self.vmq = []
        if lg:
            s.append('lgkmcnt(0)')
            self.lgq = []
        self.i('s_waitcnt ' + ' '.join(s))

    stamp_on = False
    stamp_v = 255
    stamp_s = None
    stamp_n = 0
    def stamp(self, k):
        if not self.stamp_on:
            return
        self.i('s_memtime s[96:97]')
        self.i('s_waitcnt lgkmcnt(0)')
        self.lgq = []
        if self.stamp_s is not None:
            self.i('s_mov_b32 s%d, s96' % (self.stamp_s + k))
            self.stamp_n = max(self.stamp_n, k + 1)
        else:
            self.i('v_writelane_b32 v%d, s96, %d' % (self.stamp_v, k))

    def stamp_rt(self, k):
        if not self.stamp_on:
            return
        self.i('s_memrealtime s[96:97]')
        self.i('s_waitcnt lgkmcnt(0)')
        self.lgq = []
        if self.stamp_s is not None:
            self.i('s_mov_b32 s%d, s96' % (self.stamp_s + k))
            self.stamp_n = max(self.stamp_n, k + 1)
        else:
            self.i('v_writelane_b32 v%d, s96, %d' % (self.stamp_v, k))

    def stamp_end(self, ws_lo, ws_hi, off, s_w, nw):
        if not self.stamp_on:
            return
        self.wait_all()
        self.stamp(14)
        self.stamp_rt(9)
        self.stamp_dump(ws_lo, ws_hi, off, s_w, nw)

    def stamp_dump(self, ws_lo, ws_hi, off, s_w, nw):
        if not self.stamp_on:
            return
        self.i('s_add_u32 s92, s%d, 0x%x' % (ws_lo, off))
        self.i('s_addc_u32 s93, s%d, 0' % ws_hi)
        self.i('s_and_b32 s93, s93, 0xffff')
        self.i('s_mov_b32 s94, 0x100000')
        self.i('s_mov_b32 s95, 0x20000')
        self.i('s_mul_i32 s96, s2, %d' % nw)
        self.i('s_add_u32 s96, s96, s%d' % s_w)
        self.i('s_lshl_b32 s96, s96, 8')
        self.i('v_lshlrev_b32 v1, 2, v0')
        if self.stamp_s is not None:
            for k in range(self.stamp_n):
                self.i('v_writelane_b32 v%d, s%d, %d' % (self.stamp_v, self.stamp_s + k, k))
        self.i('buffer_store_dword v%d, v1, s[92:95], s96 offen' % self.stamp_v)

    def text(self):
        return '\n'.join(self.lines) + '\n'


def vr(b, n=None):
    if n is None or n == 1:
        return 'v%d' % b
    return 'v[%d:%d]' % (b, b + n - 1)


def ar(b, n=None):
    if n is None or n == 1:
        return 'a%d' % b
    return 'a[%d:%d]' % (b, b + n - 1)


def sr(b, n=None):
    if n is None or n == 1:
        return 's%d' % b
    return 's[%d:%d]' % (b, b + n - 1)
```

```python
import sys, math, os
sys.path.insert(0, 'dev')
from asmlib import *

NAME = 'gated_mix__linear_kernel_hedgehog__geglu_ffn__prompt'
WS_H = 0
WS_PQ = 0x700000
WS_KVP = 0xC00000
WS_KVF = 0xE00000
WS_FL = 0xE20000
WS_G = 0xE30000
WS_STAMP = 0xF00000
WS_WF = 0x1000000
WF_BYTES = 8 * 74 * 5 * 1024
H_BYTES = 2048 * 1728 * 2
PQ_BYTES = 2048 * 1280 * 2
KVP_BYTES = 8 * 32 * 1280 * 4
KVF_BYTES = 32 * 1280 * 2
LOG2E = 1.4426950408889634
BIG = 0x40000000


SC = ' sc1'


def f32bits(x):
    import struct
    return struct.unpack('<I', struct.pack('<f', x))[0]


def srd(A, d, lo, hi, nrec, add=0):
    if add:
        A.i('s_add_u32 s%d, s%d, 0x%x' % (d, lo, add))
        A.i('s_addc_u32 s%d, s%d, 0' % (d + 1, hi))
        A.i('s_and_b32 s%d, s%d, 0xffff' % (d + 1, d + 1))
    else:
        A.i('s_mov_b32 s%d, s%d' % (d, lo))
        A.i('s_and_b32 s%d, s%d, 0xffff' % (d + 1, hi))
    A.i('s_mov_b32 s%d, 0x%x' % (d + 2, nrec))
    A.i('s_mov_b32 s%d, 0x20000' % (d + 3))


NBUF = 5
XBUF = 32768
WRING = 3 * XBUF
WPHI = WRING + 5 * 10240
GWL = WPHI + 8192
K1_LDS = 159744
K1_VGPR = 168
PK_OFF, PK_RS = 0, 352
PV_OFF, PV_RS = 90112, 160

S_IDX, S_C, S_RB, S_W = 3, 4, 5, 6
S_X, S_WT, S_O, S_P, S_GW, S_G, S_FL, S_WU = 40, 44, 48, 52, 56, 60, 64, 68
S_T0, S_T1, S_T2, S_CL2E, S_SUB = 72, 73, 74, 98, 99
S_NXT, S_WR, S_KX, S_KW, S_CNT, S_WM, S_WN = 8, 9, 10, 11, 12, 15, 7

V_XA = 1
V_XB = 3
V_WA = 5
V_WB = 8
V_GWA = 7
V_L, V_G, V_R, V_C = 10, 11, 12, 13
V_T = 14
S_XN = 13
S_OFF = 14
V_ACC = 16


def role_params(role):
    gu = role == 'gu'
    kv = role == 'kv'
    P = dict(gu=gu, kv=kv)
    P['nsub'] = 4 if gu else 2
    P['CH'] = 6 if gu else 10
    P['RS'] = P['CH'] * 16
    P['cstride'] = 8 if gu else 40
    P['tstride'] = 32 if gu else 8
    P['rowbytes'] = 3456 if gu else 3840
    P['SUBSZ'] = 32 * P['RS']
    P['BUFSZ'] = P['nsub'] * P['SUBSZ']
    P['NWI'] = P['nsub'] * 32 * P['CH'] // 64
    return P


def k1_loader(A, role):
    P = role_params(role)
    gu, kv = P['gu'], P['kv']
    BUFSZ, CH, rowbytes, NWI = P['BUFSZ'], P['CH'], P['rowbytes'], P['NWI']
    A.label('L_k1_ld_' + role)
    A.hist = []; A.vmq = []; A.lgq = []
    t0, t1, t2, t3 = 14, 15, 1, 2
    A.i('s_setprio 3')
    A.i('s_mov_b32 s%d, 0' % S_WR)
    A.i('s_mov_b32 s%d, 0' % S_CNT)
    A.i('s_and_b32 s%d, s%d, 1' % (S_WM, S_W))
    A.i('s_cmp_ge_u32 s%d, 10' % S_W)
    A.i('s_cbranch_scc1 L_k1_ldw_' + role)

    A.i('v_and_b32 v%d, 7, v0' % t0)
    A.i('v_xor_b32 v%d, v%d, v%d' % (t0, t0, V_G))
    A.i('v_lshrrev_b32 v%d, 3, v0' % t1)
    A.i('v_mul_u32_u24 v%d, 1280, v%d' % (t1, t1))
    A.i('v_lshl_add_u32 v16, v%d, 4, v%d' % (t0, t1))
    A.i('v_xor_b32 v%d, 4, v%d' % (t0, t0))
    A.i('v_lshl_add_u32 v17, v%d, 4, v%d' % (t0, t1))
    A.i('v_add_u32 v17, %d, v17' % (8 * 1280))
    for j in range(2, 8):
        A.i('v_add_u32 v%d, %d, v%d' % (16 + j, (j // 2) * 16 * 1280, 16 + (j & 1)))
    A.i('s_mul_i32 s%d, s%d, %d' % (S_KX, S_RB, 256 * 1280))
    A.i('s_mul_i32 s%d, s%d, %d' % (S_T0, S_WM, 128 * 1280))
    A.i('s_add_u32 s%d, s%d, s%d' % (S_KW, S_KX, S_T0))
    A.i('s_lshl_b32 s%d, s%d, 7' % (S_NXT, S_OFF))
    A.i('s_add_u32 s%d, s%d, s%d' % (S_KX, S_KW, S_NXT))
    A.i('s_lshl_b32 s%d, s%d, 14' % (S_WN, S_WM))

    def issue_x(h):
        if h == 0:
            A.i('s_add_u32 m0, s%d, s%d' % (S_WR, S_WN))
            A.i('s_mov_b32 s%d, s%d' % (S_T0, S_KX))
        else:
            A.i('s_add_u32 m0, s%d, s%d' % (S_WR, S_WN))
            A.i('s_add_u32 m0, m0, 8192')
            A.i('s_add_u32 s%d, s%d, %d' % (S_T0, S_KX, 64 * 1280))
        for j in range(8):
            A.i('buffer_load_dwordx4 v%d, s[%d:%d], s%d offen lds' % (16 + j, S_X, S_X + 3, S_T0))
            if j < 7:
                A.i('s_add_u32 m0, m0, 1024')
        if h == 1:
            A.i('s_add_u32 s%d, s%d, 128' % (S_NXT, S_NXT))
            A.i('s_cmp_eq_u32 s%d, 1280' % S_NXT)
            A.i('s_cselect_b32 s%d, 0, s%d' % (S_NXT, S_NXT))
            A.i('s_add_u32 s%d, s%d, s%d' % (S_KX, S_KW, S_NXT))
            A.i('s_add_u32 s%d, s%d, %d' % (S_WR, S_WR, XBUF))
            A.i('s_cmp_eq_u32 s%d, %d' % (S_WR, 3 * XBUF))
            A.i('s_cselect_b32 s%d, 0, s%d' % (S_WR, S_WR))
    if os.environ.get('THR', '1') == '1':
        issue_x(0); issue_x(1)
        A.i('s_waitcnt vmcnt(0)')
        A.i('s_barrier')
        issue_x(0); issue_x(1)
    else:
        issue_x(0); issue_x(1); issue_x(0); issue_x(1)
        A.i('s_waitcnt vmcnt(16)')
        A.i('s_barrier')
    A.raw('L_k1_ldx_loop_%s:' % role)
    A.i('s_barrier')
    issue_x(0)
    A.i('s_waitcnt vmcnt(8)')
    A.i('s_barrier')
    issue_x(1)
    A.i('s_add_u32 s%d, s%d, 1' % (S_CNT, S_CNT))
    A.i('s_cmp_lt_u32 s%d, 8' % S_CNT)
    A.i('s_cbranch_scc1 L_k1_ldx_loop_%s' % role)
    A.i('s_barrier')
    A.i('s_waitcnt vmcnt(0)')
    A.i('s_barrier')
    A.i('s_barrier')
    A.i('s_barrier')
    A.i('s_endpgm')

    A.raw('L_k1_ldw_%s:' % role)
    A.hist = []
    if gu:
        A.i('s_cmp_eq_u32 s%d, 0' % S_WM)
        A.i('s_cselect_b32 s%d, s26, s28' % S_T0)
        A.i('s_cselect_b32 s%d, s27, s29' % S_T1)
        srd(A, S_WT, S_T0, S_T1, 640 * 3456)
        A.i('s_sub_u32 s%d, s%d, 12' % (S_SUB, S_C))
        A.i('s_mul_i32 s%d, s%d, 192' % (S_T0, S_SUB))
    else:
        srd(A, S_WT, 18, 19, 640 * 3840)
        if role == 'q':
            A.i('s_sub_u32 s%d, s%d, 8' % (S_SUB, S_C))
            A.i('s_mul_i32 s%d, s%d, 320' % (S_T0, S_SUB))
            wpb = 6400
        else:
            A.i('s_mov_b32 s%d, s%d' % (S_SUB, S_C))
            A.i('s_mul_i32 s%d, s%d, 160' % (S_T0, S_SUB))
            A.i('s_add_u32 s%d, s%d, 1280' % (S_T0, S_T0))
            wpb = 3200
        A.i('s_mul_i32 s%d, s%d, %d' % (S_T2, S_WM, 160 if role == 'q' else 1280))
        A.i('s_add_u32 s%d, s%d, s%d' % (S_T0, S_T0, S_T2))
        A.i('s_mul_i32 s%d, s%d, %d' % (S_T2, S_SUB, wpb))
        A.i('s_add_u32 s%d, s20, s%d' % (S_P, S_T2))
        A.i('s_addc_u32 s%d, s21, 0' % (S_P + 1))
        A.i('s_and_b32 s%d, s%d, 0xffff' % (S_P + 1, S_P + 1))
        A.i('s_mov_b32 s%d, %d' % (S_P + 2, wpb))
        A.i('s_mov_b32 s%d, 0x20000' % (S_P + 3))
    CHL = 12 if gu else 10
    mulc, sh = (171, 11) if gu else (205, 11)
    NI = NWI // 2
    for inst in range(NI):
        A.i('v_add_u32 v%d, %d, v0' % (t0, 64 * inst))
        A.i('v_mul_u32_u24 v%d, %d, v%d' % (t1, mulc, t0))
        A.i('v_lshrrev_b32 v%d, %d, v%d' % (t1, sh, t1))
        A.i('v_mul_u32_u24 v%d, %d, v%d' % (t2, CHL, t1))
        A.i('v_sub_u32 v%d, v%d, v%d' % (t0, t0, t2))
        A.i('v_and_b32 v%d, 4, v%d' % (t3, t1))
        if gu:
            A.i('v_lshrrev_b32 v%d, 1, v%d' % (t2, t3))
            A.i('v_xor_b32 v%d, v%d, v%d' % (t0, t0, t2))
        A.i('v_and_b32 v%d, 0x13, v%d' % (t2, t1))
        A.i('v_lshl_or_b32 v%d, v%d, 1, v%d' % (t2, t3, t2))
        A.i('v_and_b32 v%d, 8, v%d' % (t3, t1))
        A.i('v_lshrrev_b32 v%d, 1, v%d' % (t3, t3))
        A.i('v_or_b32 v%d, v%d, v%d' % (t2, t2, t3))
        A.i('v_mul_u32_u24 v%d, %d, v%d' % (t2, rowbytes, t2))
        A.i('v_add_u32 v%d, s%d, v%d' % (t2, S_T0, t2))
        A.i('v_lshl_add_u32 v%d, v%d, 4, v%d' % (16 + inst, t0, t2))
    A.i('s_mul_i32 s%d, s%d, %d' % (S_KW, S_OFF, 64 * rowbytes))
    A.i('s_mul_i32 s%d, s%d, %d' % (S_WN, S_WM, NI * 1024))
    A.i('s_add_u32 s%d, s%d, %d' % (S_WN, S_WN, WRING))

    def issue_w():
        A.i('s_add_u32 m0, s%d, s%d' % (S_WR, S_WN))
        for j in range(NI):
            A.i('buffer_load_dwordx4 v%d, s[%d:%d], s%d offen lds' % (16 + j, S_WT, S_WT + 3, S_KW))
            if j < NI - 1:
                A.i('s_add_u32 m0, m0, 1024')
        A.i('s_add_u32 s%d, s%d, %d' % (S_KW, S_KW, 32 * rowbytes))
        A.i('s_cmp_eq_u32 s%d, %d' % (S_KW, 640 * rowbytes))
        A.i('s_cselect_b32 s%d, 0, s%d' % (S_KW, S_KW))
        A.i('s_add_u32 s%d, s%d, %d' % (S_WR, S_WR, BUFSZ))
        A.i('s_cmp_eq_u32 s%d, %d' % (S_WR, NBUF * BUFSZ))
        A.i('s_cselect_b32 s%d, 0, s%d' % (S_WR, S_WR))
    issue_w()
    if not gu:
        A.i('v_lshlrev_b32 v%d, 4, v0' % t0)
        A.i('s_lshl_b32 s%d, s%d, 12' % (S_T1, S_WM))
        A.i('s_add_u32 m0, s%d, %d' % (S_T1, WPHI))
        for j in range(4):
            A.i('buffer_load_dwordx4 v%d, s[%d:%d], s%d offen lds' % (t0, S_P, S_P + 3, S_T1))
            A.i('s_add_u32 m0, m0, 1024')
            A.i('s_add_u32 s%d, s%d, 1024' % (S_T1, S_T1))
    n = NI
    if os.environ.get('THR', '1') == '1':
        issue_w()
        A.i('s_waitcnt vmcnt(%d)' % n)
        A.i('s_barrier')
        issue_w(); issue_w()
    else:
        for i in range(3):
            issue_w()
        A.i('s_waitcnt vmcnt(%d)' % (3 * n))
        A.i('s_barrier')
    A.raw('L_k1_ldw_loop_%s:' % role)
    A.i('s_waitcnt vmcnt(%d)' % (2 * n))
    A.i('s_barrier')
    issue_w()
    A.i('s_add_u32 s%d, s%d, 1' % (S_CNT, S_CNT))
    A.i('s_cmp_lt_u32 s%d, 16' % S_CNT)
    A.i('s_cbranch_scc1 L_k1_ldw_loop_%s' % role)
    A.i('s_waitcnt vmcnt(%d)' % (2 * n))
    A.i('s_barrier')
    A.i('s_waitcnt vmcnt(%d)' % n)
    A.i('s_barrier')
    A.i('s_waitcnt vmcnt(0)')
    A.i('s_barrier')
    A.i('s_barrier')
    A.i('s_endpgm')


def k1_repack(A):
    A.label('L_k1_rp')
    A.hist = []; A.vmq = []; A.lgq = []
    t0, t1, t2, t3, t4, t5 = 14, 15, 1, 2, 3, 4
    VD, VO, VO4, VTR, VST, FR = 16, 21, 26, 31, 32, 36
    srd(A, S_WT, 30, 31, 1728 * 1280)
    srd(A, S_WU, 22, 23, 640 * 1280)
    srd(A, S_O, 38, 39, WF_BYTES, WS_WF)
    for inst in range(5):
        A.i('v_add_u32 v%d, %d, v0' % (t1, 64 * inst))
        A.i('v_mul_u32_u24 v%d, 205, v%d' % (t0, t1))
        A.i('v_lshrrev_b32 v%d, 11, v%d' % (t0, t0))
        A.i('v_mul_u32_u24 v%d, 10, v%d' % (t2, t0))
        A.i('v_sub_u32 v%d, v%d, v%d' % (t1, t1, t2))
        A.i('v_lshlrev_b32 v%d, 4, v%d' % (t1, t1))
        A.i('v_and_b32 v%d, 7, v%d' % (t2, t0))
        A.i('v_and_b32 v%d, 8, v%d' % (t3, t0))
        A.i('v_lshl_or_b32 v%d, v%d, 1, v%d' % (t2, t3, t2))
        A.i('v_and_b32 v%d, 16, v%d' % (t3, t0))
        A.i('v_lshrrev_b32 v%d, 1, v%d' % (t3, t3))
        A.i('v_or_b32 v%d, v%d, v%d' % (t2, t2, t3))
        A.i('v_mul_u32_u24 v%d, 1280, v%d' % (t2, t2))
        A.i('v_add_u32 v%d, v%d, v%d' % (VD + inst, t2, t1))
        A.i('v_bfe_u32 v%d, v%d, 3, 1' % (t3, t0))
        A.i('v_and_b32 v%d, 3, v%d' % (t4, t0))
        A.i('v_lshl_add_u32 v%d, v%d, 2, v%d' % (t3, t3, t4))
        A.i('v_mul_u32_u24 v%d, 20, v%d' % (t3, t3))
        A.i('v_lshrrev_b32 v%d, 4, v%d' % (t4, t0))
        A.i('v_bfe_u32 v%d, v%d, 2, 1' % (t5, t0))
        A.i('v_lshl_add_u32 v%d, v%d, 1, v%d' % (t4, t4, t5))
        A.i('v_lshl_add_u32 v%d, v%d, 2, v%d' % (t5, t4, t3))
        A.i('v_add3_u32 v%d, v%d, v%d, 16' % (t4, t4, t3))
        A.i('v_mul_u32_u24 v%d, 1280, v%d' % (t5, t5))
        A.i('v_mul_u32_u24 v%d, 1280, v%d' % (t4, t4))
        A.i('v_add_u32 v%d, v%d, v%d' % (VO + inst, t5, t1))
        A.i('v_add_u32 v%d, v%d, v%d' % (VO4 + inst, t4, t1))
    A.i('s_mul_i32 s%d, s%d, 5120' % (S_WR, S_W))
    A.i('v_lshrrev_b32 v%d, 1, v%d' % (t0, V_G))
    A.i('v_lshlrev_b32 v%d, 4, v%d' % (t0, t0))
    A.i('v_and_b32 v%d, 1, v%d' % (t1, V_G))
    A.i('v_lshl_add_u32 v%d, v%d, 2, v%d' % (t0, t1, t0))
    A.i('v_add_u32 v%d, v%d, v%d' % (t0, t0, V_R))
    A.i('v_mul_u32_u24 v%d, 160, v%d' % (t0, t0))
    A.i('v_lshl_add_u32 v%d, v%d, 3, v%d' % (t0, V_C, t0))
    A.i('v_add_u32 v%d, s%d, v%d' % (VTR, S_WR, t0))
    A.i('v_lshlrev_b32 v%d, 4, v0' % VST)
    srd(A, S_GW, 32, 33, 1280)
    srd(A, S_G, 38, 39, 8192, WS_G)
    srd(A, S_FL, 38, 39, 1024, WS_FL)
    GX, GWR, GA = 56, 76, 96
    A.i('v_lshlrev_b32 v%d, 4, v%d' % (t0, V_L))
    for i in range(5):
        A.i('buffer_load_dwordx4 %s, v%d, s[%d:%d], 0 offen offset:%d' % (vr(GWR + 4 * i, 4), t0, S_GW, S_GW + 3, 256 * i))
    A.i('v_mul_u32_u24 v%d, 1280, v%d' % (t1, V_G))
    A.i('v_add_u32 v%d, v%d, v%d' % (t1, t1, t0))
    A.i('v_lshlrev_b32 v%d, 2, v%d' % (t2, V_G))
    A.i('v_mov_b32 v%d, 0x%x' % (t3, BIG))
    A.i('v_cmp_eq_u32 vcc, 0, v%d' % V_L)
    A.i('v_cndmask_b32 v%d, v%d, v%d, vcc' % (t2, t3, t2))
    A.i('s_mov_b32 s%d, 0x%08x' % (S_CL2E, f32bits(LOG2E)))
    A.i('s_mul_i32 s%d, s%d, 12' % (S_CNT, S_SUB))
    A.i('s_add_u32 s%d, s%d, s%d' % (S_CNT, S_CNT, S_W))
    A.i('s_cmp_eq_u32 s%d, 0' % S_CNT)
    A.i('s_cselect_b32 s%d, 0, 0x%x' % (S_T0, BIG))
    for k in range(4):
        A.i('v_mov_b32 v%d, 0' % (GA + k))
    A.i('buffer_store_dwordx4 %s, v%d, s[%d:%d], s%d offen' % (vr(GA, 4), VST, S_FL, S_FL + 3, S_T0))
    A.fence()
    A.raw('L_k1_gate_loop:')
    A.i('s_mul_i32 s%d, s%d, 5120' % (S_T0, S_CNT))
    for i in range(5):
        A.i('buffer_load_dwordx4 %s, v%d, s[%d:%d], s%d offen offset:%d' % (vr(GX + 4 * i, 4), t1, S_X, S_X + 3, S_T0, 256 * i))
    A.i('v_mov_b32 v%d, 0' % GA)
    A.i('v_mov_b32 v%d, 0' % (GA + 1))
    A.i('s_waitcnt vmcnt(0)')
    for i in range(20):
        A.i('v_dot2_f32_bf16 v%d, v%d, v%d, v%d' % (GA + (i & 1), GX + i, GWR + i, GA + (i & 1)))
    A.i('s_nop 3')
    A.i('v_add_f32 v%d, v%d, v%d' % (GA, GA, GA + 1))
    for m in ('quad_perm:[1,0,3,2]', 'quad_perm:[2,3,0,1]', 'row_half_mirror', 'row_mirror'):
        A.i('v_add_f32_dpp v%d, v%d, v%d %s row_mask:0xf bank_mask:0xf' % (GA, GA, GA, m))
    A.i('v_mul_f32 v%d, s%d, v%d' % (GA, S_CL2E, GA))
    A.i('v_exp_f32 v%d, -v%d' % (GA, GA))
    A.i('v_add_f32 v%d, 1.0, v%d' % (GA, GA))
    A.i('v_rcp_f32 v%d, v%d' % (GA, GA))
    A.i('s_lshl_b32 s%d, s%d, 4' % (S_T0, S_CNT))
    A.i('buffer_store_dword v%d, v%d, s[%d:%d], s%d offen' % (GA, t2, S_G, S_G + 3, S_T0))
    A.fence()
    A.i('s_add_u32 s%d, s%d, 192' % (S_CNT, S_CNT))
    A.i('s_cmp_lt_u32 s%d, 512' % S_CNT)
    A.i('s_cbranch_scc1 L_k1_gate_loop')
    A.i('s_mul_i32 s%d, s%d, 12' % (S_CNT, S_SUB))
    A.i('s_add_u32 s%d, s%d, s%d' % (S_CNT, S_CNT, S_W))
    A.fence()
    A.raw('L_k1_rp_loop:')
    A.i('s_cmp_ge_u32 s%d, 592' % S_CNT)
    A.i('s_cbranch_scc1 L_k1_exit')
    A.i('s_and_b32 s%d, s%d, 7' % (S_T0, S_CNT))
    A.i('s_lshr_b32 s%d, s%d, 3' % (S_T1, S_CNT))
    A.i('s_mul_i32 s%d, s%d, 74' % (S_KX, S_T0))
    A.i('s_add_u32 s%d, s%d, s%d' % (S_KX, S_KX, S_T1))
    A.i('s_mul_i32 s%d, s%d, 5120' % (S_KX, S_KX))
    A.i('s_mul_i32 s%d, s%d, 160' % (S_T0, S_T0))
    A.i('s_mov_b32 m0, s%d' % S_WR)
    A.i('s_cmp_ge_u32 s%d, 54' % S_T1)
    A.i('s_cbranch_scc1 L_k1_rp_wo')

    def dmas(v, sreg, soff):
        for inst in range(5):
            A.i('buffer_load_dwordx4 v%d, s[%d:%d], s%d offen lds' % (v + inst, sreg, sreg + 3, soff))
            if inst < 4:
                A.i('s_add_u32 m0, m0, 1024')
    A.i('s_mul_i32 s%d, s%d, 40960' % (S_T2, S_T1))
    A.i('s_add_u32 s%d, s%d, s%d' % (S_T2, S_T2, S_T0))
    dmas(VD, S_WT, S_T2)
    A.i('s_branch L_k1_rp_go')
    A.raw('L_k1_rp_wo:')
    A.hist = []
    A.i('s_sub_u32 s%d, s%d, 54' % (S_T1, S_T1))
    A.i('s_mul_i32 s%d, s%d, 52' % (S_T2, S_T1))
    A.i('s_lshr_b32 s%d, s%d, 8' % (S_T2, S_T2))
    A.i('s_mul_i32 s%d, s%d, 5' % (S_KW, S_T2))
    A.i('s_sub_u32 s%d, s%d, s%d' % (S_T1, S_T1, S_KW))
    A.i('s_mul_i32 s%d, s%d, %d' % (S_T2, S_T2, 160 * 1280))
    A.i('s_add_u32 s%d, s%d, s%d' % (S_T2, S_T2, S_T0))
    A.i('s_cmp_eq_u32 s%d, 4' % S_T1)
    A.i('s_cbranch_scc1 L_k1_rp_wo4')
    A.i('s_mul_i32 s%d, s%d, 1280' % (S_T1, S_T1))
    A.i('s_add_u32 s%d, s%d, s%d' % (S_T2, S_T2, S_T1))
    dmas(VO, S_WU, S_T2)
    A.i('s_branch L_k1_rp_go')
    A.raw('L_k1_rp_wo4:')
    A.hist = []
    dmas(VO4, S_WU, S_T2)
    A.raw('L_k1_rp_go:')
    A.hist = []
    A.i('s_waitcnt vmcnt(0)')
    for t in range(5):
        for jh in range(2):
            A.i('ds_read_b64_tr_b16 %s, v%d offset:%d' % (vr(FR + 4 * t + 2 * jh, 2), VTR, 8 * jh * 160 + 32 * t))
    A.i('s_waitcnt lgkmcnt(0)')
    for t in range(4):
        A.i('buffer_store_dwordx4 %s, v%d, s[%d:%d], s%d offen offset:%d' % (vr(FR + 4 * t, 4), VST, S_O, S_O + 3, S_KX, 1024 * t) + SC)
    A.i('s_add_u32 s%d, s%d, 4096' % (S_KX, S_KX))
    A.i('buffer_store_dwordx4 %s, v%d, s[%d:%d], s%d offen' % (vr(FR + 16, 4), VST, S_O, S_O + 3, S_KX) + SC)
    A.i('s_add_u32 s%d, s%d, 192' % (S_CNT, S_CNT))
    A.fence()
    A.i('s_branch L_k1_rp_loop')


def wp_read(A, idx, WPR):
    kap, tp = idx // 5, idx % 5
    rb_ = WPR + tp * 4
    for jh in range(2):
        off = (8 * kap + 4 * jh) * 40 + 8 * tp
        if kap == 2 and jh == 1:
            continue
        A.i('ds_read_b64_tr_b16 %s, v%d offset:%d' % (vr(rb_ + 2 * jh, 2), V_T, off), tag=('wp', idx))


def phi_compact(A, ACC):
    for st in range(4):
        T, B = ACC + 20 * st, ACC + 12 * st
        for k in range(10):
            A.i('v_cvt_pk_bf16_f32 v%d, v%d, v%d' % (B + k, T + 2 * k, T + 2 * k + 1))
        if st < 3:
            pass
    for st in range(4):
        B = ACC + 12 * st
        A.i('v_mov_b32 v%d, 0' % (B + 10))
        A.i('v_mov_b32 v%d, 0' % (B + 11))


def phi_mfma_ops(A, BF, WPR, P, more):
    ops = []
    for idx in range(15):
        def f(idx=idx):
            kap, tp = idx // 5, idx % 5
            A.wait_lg(('wp', idx))
            c = '0' if kap == 0 else vr(P + 4 * tp, 4)
            A.i('v_mfma_f32_16x16x32_bf16 %s, %s, %s, %s' % (vr(P + 4 * tp, 4), vr(WPR + tp * 4, 4), vr(BF + 4 * kap, 4), c))
            if idx + 5 < 15:
                wp_read(A, idx + 5, WPR)
            elif more:
                wp_read(A, idx - 10, WPR)
        ops.append(f)
    return ops


def phi_softmax_ops(P, E, OUT):
    L = []
    mx, mn, s0, s2 = E + 20, E + 22, E + 24, E + 21
    t1 = E + 23
    L.append('v_max3_f32 v%d, v%d, v%d, v%d' % (mx, P, P + 1, P + 2))
    L.append('v_min3_f32 v%d, v%d, v%d, v%d' % (mn, P, P + 1, P + 2))
    L.append('v_max3_f32 v%d, v%d, v%d, v%d' % (s2, P + 3, P + 4, P + 5))
    L.append('v_min3_f32 v%d, v%d, v%d, v%d' % (t1, P + 3, P + 4, P + 5))
    for k in range(6, 20, 4):
        L.append('v_max3_f32 v%d, v%d, v%d, v%d' % (mx, mx, P + k, P + k + 1))
        L.append('v_min3_f32 v%d, v%d, v%d, v%d' % (mn, mn, P + k, P + k + 1))
        if k + 3 < 20:
            L.append('v_max3_f32 v%d, v%d, v%d, v%d' % (s2, s2, P + k + 2, P + k + 3))
            L.append('v_min3_f32 v%d, v%d, v%d, v%d' % (t1, t1, P + k + 2, P + k + 3))
    L.append('v_max_f32 v%d, v%d, v%d' % (mx, mx, s2))
    L.append('v_min_f32 v%d, v%d, v%d' % (mn, mn, t1))
    L.append('v_mul_f32 v%d, s%d, v%d' % (mx, S_CL2E, mx))
    L.append('v_mul_f32 v%d, s%d, v%d' % (mn, S_CL2E, mn))
    sc = 's[%d:%d]' % (S_CL2E, S_CL2E + 1)
    for sign in range(2):
        for k in range(0, 20, 2):
            if sign == 0:
                L.append('v_pk_fma_f32 %s, %s, %s, %s op_sel_hi:[1,0,0] neg_lo:[0,0,1] neg_hi:[0,0,1]' % (
                    vr(E + k, 2), vr(P + k, 2), sc, vr(mx, 2)))
            else:
                L.append('v_pk_fma_f32 %s, %s, %s, %s op_sel_hi:[1,0,0] neg_lo:[1,0,0] neg_hi:[1,0,0]' % (
                    vr(E + k, 2), vr(P + k, 2), sc, vr(mn, 2)))
        for k in range(20):
            L.append('v_exp_f32 v%d, v%d' % (E + k, E + k))
            if k == 4:
                L.append('v_pk_add_f32 %s, %s, %s' % (vr(s0, 2), vr(E, 2), vr(E + 2, 2)))
            elif k > 4 and k % 2 == 0:
                L.append('v_pk_add_f32 %s, %s, %s' % (vr(s0, 2), vr(s0, 2), vr(E + k - 2, 2)))
        L.append('v_pk_add_f32 %s, %s, %s' % (vr(s0, 2), vr(s0, 2), vr(E + 18, 2)))
        L.append('v_add_f32 v%d, v%d, v%d' % (s0, s0, s0 + 1))
        L.append('v_rcp_f32 v%d, v%d' % (s0, s0))
        for k in range(0, 20, 2):
            L.append('v_pk_mul_f32 %s, %s, %s op_sel_hi:[1,0]' % (vr(E + k, 2), vr(E + k, 2), vr(s0, 2)))
        for k in range(10):
            L.append('v_cvt_pk_bf16_f32 v%d, v%d, v%d' % (OUT[sign * 10 + k], E + 2 * k, E + 2 * k + 1))
    return L


def phi_pipeline(A, ACC, WPR, E, emit_out):
    PB = [116, ACC + 48]
    XO = ACC + 68
    phi_compact(A, ACC)
    for f in phi_mfma_ops(A, ACC, WPR, PB[0], True):
        f()
    A.stamp(5)
    for st in range(4):
        if st in (1, 2):
            A.stamp(9 + st)
        B = ACC + 12 * st
        chunks = [B, B + 4, B + 8, XO + 8 * (st % 2) if False else XO, XO + 4]
        OUT = [c + k for c in chunks for k in range(4)]
        sm = phi_softmax_ops(PB[st % 2], E, OUT)
        mf = phi_mfma_ops(A, ACC + 12 * (st + 1), WPR, PB[(st + 1) % 2], st + 1 < 3) if st < 3 else []
        gap = max(1, (len(sm) - 30) // 15)
        for k, ins in enumerate(sm):
            A.i(ins)
            if mf and k >= 4 and (k - 4) % gap == 0:
                mf.pop(0)()
        for f in mf:
            f()
        emit_out(st, chunks)


def k1_role(A, role):
    PP = role_params(role)
    gu, kv = PP['gu'], PP['kv']
    RS, cstride, tstride, SUBSZ, BUFSZ = (PP[k] for k in ('RS', 'cstride', 'tstride', 'SUBSZ', 'BUFSZ'))
    if gu:
        RS = 192
    NWB = 3 if gu else 1
    NS = 4
    NT = 6 if gu else 5
    LA = 4
    RING = NT
    nb = NT - LA - 1
    if gu:
        V_XF, V_RING = 112, 144
    else:
        V_XF, V_RING = 96, 128
    XSET = NS * 4
    A.label('L_k1_' + role)
    A.hist = []; A.vmq = []; A.lgq = []
    A.i('s_cmp_ge_u32 s%d, 8' % S_W)
    A.i('s_cbranch_scc1 L_k1_ld_' + role)
    A.stamp(0)
    A.stamp_rt(8)
    t0, t1, t2, t3 = V_T, V_T + 1, V_XF, V_XF + 1
    PF = os.environ.get('PF', '')
    if 'x' in PF:
        A.i('s_lshr_b32 s%d, s2, 3' % S_T0)
        A.i('s_mul_i32 s%d, s%d, %d' % (S_T0, S_T0, 704 * 128))
        A.i('s_mul_i32 s%d, s%d, %d' % (S_T1, S_W, 88 * 128))
        A.i('s_add_u32 s%d, s%d, s%d' % (S_T0, S_T0, S_T1))
        A.i('v_lshlrev_b32 v%d, 7, v0' % t0)
        A.i('s_mov_b32 m0, %d' % K1_LDS)
        A.i('buffer_load_dword v%d, s[%d:%d], s%d offen lds' % (t0, S_X, S_X + 3, S_T0), tag='pf')
        A.i('s_add_u32 s%d, s%d, 8192' % (S_T0, S_T0))
        A.i('s_mov_b64 exec, 0xffffff')
        A.i('buffer_load_dword v%d, s[%d:%d], s%d offen lds' % (t0, S_X, S_X + 3, S_T0), tag='pf')
        A.i('s_mov_b64 exec, -1')
    A.i('v_lshrrev_b32 v%d, 1, v%d' % (t0, V_G))
    A.i('v_lshlrev_b32 v%d, 4, v%d' % (t0, t0))
    A.i('v_and_b32 v%d, 1, v%d' % (t2, V_G))
    A.i('v_lshl_add_u32 v%d, v%d, 2, v%d' % (t0, t2, t0))
    A.i('v_add_u32 v%d, v%d, v%d' % (t0, t0, V_R))
    A.i('v_mul_u32_u24 v%d, %d, v%d' % (t0, RS, t0))
    A.i('v_mul_u32_u24 v%d, %d, v%d' % (t1, cstride, V_C))
    if gu:
        A.i('v_add3_u32 v%d, v%d, v%d, %s' % (t0, t0, t1, '0'))
        A.i('v_add_u32 v%d, %d, v%d' % (t0, WRING, t0))
        for k in range(3):
            A.i('s_cmp_eq_u32 s%d, 0' % S_WN)
            A.i('s_cselect_b32 s%d, %d, %d' % (S_T0, k, [4, 5, 3][k]))
            A.i('v_xor_b32 v%d, s%d, v%d' % (t1, S_T0, t2))
            A.i('v_lshl_add_u32 v%d, v%d, 5, v%d' % (V_WA + k, t1, t0))
    else:
        A.i('s_mul_i32 s%d, s%d, %d' % (S_T0, S_WN, SUBSZ))
        A.i('s_add_u32 s%d, s%d, %d' % (S_T0, S_T0, WRING))
        A.i('v_add3_u32 v%d, v%d, v%d, s%d' % (V_WA, t0, t1, S_T0))
    A.i('v_lshrrev_b32 v%d, 1, v%d' % (t0, V_L))
    A.i('v_xor_b32 v%d, v%d, v%d' % (t1, t0, V_G))
    A.i('v_lshlrev_b32 v%d, 7, v%d' % (t0, V_L))
    A.i('v_lshl_add_u32 v%d, v%d, 4, v%d' % (t0, t1, t0))
    A.i('s_lshl_b32 s%d, s%d, 13' % (S_T0, S_WM))
    A.i('v_add_u32 v%d, s%d, v%d' % (V_XA, S_T0, t0))
    A.i('v_xor_b32 v%d, 64, v%d' % (V_XA + 1, V_XA))
    A.i('v_mov_b32 v%d, v%d' % (V_XB, V_XA))
    for k in range(NWB):
        A.i('v_mov_b32 v%d, v%d' % (V_WB + k, V_WA + k))
    A.i('s_mov_b32 s%d, %d' % (S_NXT, BUFSZ))
    A.i('s_mov_b32 s%d, 0' % S_XN)
    A.i('s_mov_b32 s%d, 0' % S_CNT)
    for k in range(NT * NS * 4):
        A.i('v_mov_b32 v%d, 0' % (V_ACC + k))
    if gu:
        A.i('s_sub_u32 s%d, s%d, 12' % (S_SUB, S_C))
        srd(A, S_O, 38, 39, H_BYTES, WS_H)
    elif kv:
        A.i('s_mov_b32 s%d, s%d' % (S_SUB, S_C))
        srd(A, S_O, 38, 39, KVP_BYTES, WS_KVP)
    else:
        A.i('s_sub_u32 s%d, s%d, 8' % (S_SUB, S_C))
        srd(A, S_O, 38, 39, PQ_BYTES, WS_PQ)
    A.stamp(1)

    def tile_off(n):
        if gu:
            return (n // 3) * 6144
        return n * tstride

    def rd_w(p, n, jh):
        rg = V_RING + (n % RING) * 4
        wb = V_WB + p * NWB + (n % 3 if gu else 0)
        A.i('ds_read_b64_tr_b16 %s, v%d offset:%d' % (vr(rg + 2 * jh, 2), wb, tile_off(n) + 8 * jh * RS),
            tag=('W', p, n))

    def rd_x(p, st):
        A.i('ds_read_b128 %s, v%d offset:%d' % (vr(V_XF + p * XSET + st * 4, 4), V_XB + p, st * 2048), tag=('X', p))

    def rd_gw(p):
        A.i('v_add_u32 v%d, s%d, v%d' % (V_WA + 1, S_KX, V_GWA))
        A.i('ds_read_b128 %s, v%d' % (vr(V_GWF + p * 4, 4), V_WA + 1), tag=('X', p))
        A.i('s_add_u32 s%d, s%d, 64' % (S_KX, S_KX))
        A.i('s_cmp_eq_u32 s%d, 1280' % S_KX)
        A.i('s_cselect_b32 s%d, 0, s%d' % (S_KX, S_KX))

    def acc(n, st):
        return V_ACC + (st * NT + n) * 4

    def stage(p):
        for n in range(NT):
            fill = []
            if n == nb:
                def bar():
                    if p == 1:
                        A.i('s_add_u32 s%d, s%d, %d' % (S_XN, S_XN, XBUF))
                        A.i('s_cmp_eq_u32 s%d, %d' % (S_XN, 3 * XBUF))
                        A.i('s_cselect_b32 s%d, 0, s%d' % (S_XN, S_XN))
                    A.i('s_barrier')
                    A.i('v_add_u32 v%d, s%d, v%d' % (V_XB + (p ^ 1), S_XN, V_XA + (p ^ 1)))
                    for k in range(NWB):
                        A.i('v_add_u32 v%d, s%d, v%d' % (V_WB + (p ^ 1) * NWB + k, S_NXT, V_WA + k))
                fill.append(bar)
                def adv():
                    A.i('s_add_u32 s%d, s%d, %d' % (S_NXT, S_NXT, BUFSZ))
                    A.i('s_cmp_eq_u32 s%d, %d' % (S_NXT, NBUF * BUFSZ))
                    A.i('s_cselect_b32 s%d, 0, s%d' % (S_NXT, S_NXT))
                fill.append(adv)
            xs = n - (nb + 1)
            if 0 <= xs < 2:
                for st in range(xs * NS // 2, (xs + 1) * NS // 2):
                    fill.append(lambda st=st: rd_x(p ^ 1, st))
            for jh in range(2):
                if n + LA < NT:
                    fill.insert(jh, (lambda jh=jh, n=n: rd_w(p, n + LA, jh)))
                else:
                    fill.append(lambda jh=jh, n=n: rd_w(p ^ 1, n + LA - NT, jh))
            if n == 0:
                A.wait_lg(('X', p))
            A.wait_lg(('W', p, n))
            rg = V_RING + (n % RING) * 4
            mf = []
            for st in range(NS):
                mf.append('v_mfma_f32_16x16x32_bf16 %s, %s, %s, %s' % (vr(acc(n, st), 4), vr(rg, 4),
                                                                     vr(V_XF + p * XSET + st * 4, 4), vr(acc(n, st), 4)))
            for k, m in enumerate(mf):
                if not os.environ.get('NOMFMA'):
                    A.i(m)
                rem = len(mf) - k
                take = -(-len(fill) // rem)
                for _ in range(take):
                    fill.pop(0)()

    A.i('s_barrier')
    for st in range(NS):
        rd_x(0, st)
    for n in range(LA):
        rd_w(0, n, 0); rd_w(0, n, 1)
    A.wait_all(vm=False)
    A.stamp(2)
    saved = (A.lines, A.hist, A.vmq, A.count, A.nops)
    A.lines = []; A.hist = []
    stage(0); stage(1)
    steady = list(A.lgq)
    A.lines, A.hist, A.vmq, A.count, A.nops = saved
    A.lgq = list(steady)
    A.fence()
    A.raw('L_k1_loop_%s:' % role)
    stage(0)
    stage(1)
    assert A.lgq == steady, (A.lgq, steady)
    A.i('s_add_u32 s%d, s%d, 1' % (S_CNT, S_CNT))
    A.i('s_cmp_lt_u32 s%d, 10' % S_CNT)
    A.i('s_cbranch_scc1 L_k1_loop_%s' % role)
    A.fence()
    A.wait_all()
    A.stamp(12)

    A.i('s_lshl_b32 s%d, s%d, 4' % (S_T0, S_RB))
    A.i('s_lshl_b32 s%d, s%d, 2' % (S_T1, S_WM))
    A.i('s_add_u32 s%d, s%d, s%d' % (S_T0, S_T0, S_T1))
    if gu:
        C0 = -2.0 * math.sqrt(2.0 / math.pi) * LOG2E
        C1 = C0 * 0.044715
        vC0, vO = t0, t1
        A.i('v_mov_b32 v%d, 0x%08x' % (vC0, f32bits(C0)))
        A.i('s_mov_b32 s%d, 0x%08x' % (S_CL2E, f32bits(C1)))
        A.i('s_mul_i32 s%d, s%d, 54' % (S_T0, S_T0))
        A.i('s_mul_i32 s%d, s%d, 3' % (S_T1, S_SUB))
        A.i('s_add_u32 s%d, s%d, s%d' % (S_T0, S_T0, S_T1))
        A.i('s_lshl_b32 s%d, s%d, 10' % (S_T0, S_T0))
        A.i('s_lshl_b32 s%d, s%d, 11' % (S_T1, S_WN))
        A.i('s_add_u32 s%d, s%d, s%d' % (S_T1, S_T1, S_T0))
        A.i('s_lshl_b32 s%d, s%d, 3' % (S_T2, S_WN))
        A.i('s_add_u32 s%d, s%d, s%d' % (S_T2, S_T2, S_T0))
        A.i('s_add_u32 s%d, s%d, 1024' % (S_T2, S_T2))
        A.i('v_lshlrev_b32 v%d, 4, v0' % vO)
        for st in range(4):
            e = 112 + (st % 2) * 28
            xg, xu = acc(0, st), acc(3, st)
            sc = 's[%d:%d]' % (S_CL2E, S_CL2E + 1)
            for j in range(0, 12, 2):
                A.i('v_pk_mul_f32 %s, %s, %s' % (vr(e + j, 2), vr(xg + j, 2), vr(xg + j, 2)))
            for j in range(0, 12, 2):
                A.i('v_pk_fma_f32 %s, %s, %s, %s op_sel_hi:[1,0,0]' % (vr(e + j, 2), vr(e + j, 2), sc, vr(vC0, 2)))
            for j in range(0, 12, 2):
                A.i('v_pk_mul_f32 %s, %s, %s' % (vr(e + j, 2), vr(e + j, 2), vr(xg + j, 2)))
            for j in range(12):
                A.i('v_exp_f32 v%d, v%d' % (e + j, e + j))
                if j % 2 == 1:
                    A.i('v_pk_mul_f32 %s, %s, %s' % (vr(xg + j - 1, 2), vr(xg + j - 1, 2), vr(xu + j - 1, 2)))
            for j in range(0, 12, 2):
                A.i('v_pk_add_f32 %s, %s, 1.0 op_sel_hi:[1,0]' % (vr(e + j, 2), vr(e + j, 2)))
            for j in range(12):
                A.i('v_rcp_f32 v%d, v%d' % (e + j, e + j))
            for j in range(0, 12, 2):
                A.i('v_pk_mul_f32 %s, %s, %s' % (vr(e + j, 2), vr(e + j, 2), vr(xg + j, 2)))
            for j in range(6):
                A.i('v_cvt_pk_bf16_f32 v%d, v%d, v%d' % (e + 12 + j, e + 2 * j, e + 2 * j + 1))
            A.i('buffer_store_dwordx4 %s, v%d, s[%d:%d], s%d offen' % (vr(e + 12, 4), vO, S_O, S_O + 3, S_T1) + SC, tag='st')
            A.i('buffer_store_dwordx2 %s, v%d, s[%d:%d], s%d offen' % (vr(e + 16, 2), vO, S_O, S_O + 3, S_T2) + SC, tag='st')
            if st < 3:
                A.i('s_add_u32 s%d, s%d, %d' % (S_T1, S_T1, 54 * 1024))
                A.i('s_add_u32 s%d, s%d, %d' % (S_T2, S_T2, 54 * 1024))
        A.stamp(13)
        A.stamp_end(38, 39, WS_STAMP, S_W, 8)
        A.i('s_endpgm')
        return

    WPR, P, E, MISC = 96, 116, 136, 162
    t2, t3 = 1, 2
    A.i('s_mov_b32 s%d, 0x%08x' % (S_CL2E, f32bits(LOG2E)))
    A.i('v_mul_u32_u24 v%d, 800, v%d' % (t0, V_G))
    A.i('v_mul_u32_u24 v%d, 40, v%d' % (t1, V_R))
    if kv:
        A.i('s_mov_b32 s%d, %d' % (S_T1, WPHI))
    else:
        A.i('s_mul_i32 s%d, s%d, 3200' % (S_T1, S_WN))
        A.i('s_add_u32 s%d, s%d, %d' % (S_T1, S_T1, WPHI))
    A.i('v_add3_u32 v%d, v%d, v%d, s%d' % (t0, t0, t1, S_T1))
    A.i('v_mov_b32 v%d, %d' % (t1, WPHI + 6400))
    A.i('v_cmp_eq_u32 vcc, v%d, v%d' % (V_C, V_G))
    A.i('v_cndmask_b32 v%d, v%d, v%d, vcc' % (V_T, t1, t0))
    for idx in range(5):
        wp_read(A, idx, WPR)
    if role == 'q':
        vO = MISC
        A.i('v_mul_u32_u24 v%d, 1280, v%d' % (vO, V_G))
        A.i('v_lshl_add_u32 v%d, v%d, 4, v%d' % (vO, V_L, vO))
        A.i('s_lshl_b32 s%d, s%d, 5' % (S_T0, S_T0))
        A.i('s_lshl_b32 s%d, s%d, 3' % (S_T1, S_SUB))
        A.i('s_add_u32 s%d, s%d, s%d' % (S_T0, S_T0, S_T1))
        A.i('s_lshl_b32 s%d, s%d, 2' % (S_T1, S_WN))
        A.i('s_add_u32 s%d, s%d, s%d' % (S_T0, S_T0, S_T1))
        A.i('s_mul_i32 s%d, s%d, 1280' % (S_T0, S_T0))
        def out_q(st, chunks):
            for k in range(5):
                A.i('buffer_store_dwordx4 %s, v%d, s[%d:%d], s%d offen offset:%d' % (
                    vr(chunks[k], 4), vO, S_O, S_O + 3, S_T0, 256 * k) + SC, tag='st')
            if st < 3:
                A.i('s_add_u32 s%d, s%d, %d' % (S_T0, S_T0, 32 * 1280))
        phi_pipeline(A, V_ACC, WPR, E, out_q)
        A.stamp(13)
        A.stamp_end(38, 39, WS_STAMP, S_W, 8)
        A.i('s_endpgm')
        return

    A.stamp(3)
    A.i('s_barrier')
    A.stamp(4)
    vP = MISC + 3
    A.i('s_lshl_b32 s%d, s%d, 6' % (S_T0, S_WM))
    A.i('v_add_u32 v%d, s%d, v%d' % (t1, S_T0, V_L))
    A.fence()
    A.i('s_cmp_eq_u32 s%d, 0' % S_WN)
    A.i('s_cbranch_scc1 L_k1_kv_k')
    lq = list(A.lgq)
    A.i('v_mul_u32_u24 v%d, %d, v%d' % (vP, PV_RS, t1))
    A.i('v_mul_u32_u24 v%d, 40, v%d' % (t2, V_G))
    A.i('v_add3_u32 v%d, v%d, v%d, %s' % (vP, vP, t2, '0'))
    A.i('v_add_u32 v%d, %d, v%d' % (vP, PV_OFF, vP))
    for st in range(4):
        a = acc(0, st)
        for k in range(10):
            A.i('v_cvt_pk_bf16_f32 v%d, v%d, v%d' % (a + k, a + 2 * k, a + 2 * k + 1))
        for t in range(5):
            A.i('ds_write_b64 v%d, %s offset:%d' % (vP, vr(a + 2 * t, 2), st * 16 * PV_RS + 8 * t), tag='lw')
    A.i('s_branch L_k1_kv_join')
    A.raw('L_k1_kv_k:')
    A.hist = []
    A.lgq = lq
    A.i('v_mul_u32_u24 v%d, %d, v%d' % (vP, PK_RS, t1))
    A.i('v_mul_u32_u24 v%d, 80, v%d' % (t2, V_G))
    A.i('v_add_u32 v%d, v%d, v%d' % (vP, vP, t2))
    def out_k(st, chunks):
        for k in range(5):
            A.i('ds_write_b128 v%d, %s offset:%d' % (vP, vr(chunks[k], 4), st * 16 * PK_RS + 16 * k), tag='lw')
    phi_pipeline(A, V_ACC, WPR, E, out_k)
    A.raw('L_k1_kv_join:')
    A.hist = []
    A.wait_all(vm=False)
    A.stamp(6)
    A.i('s_barrier')
    A.stamp(7)
    vA0, vA1, vB = V_T + 1, 1, 2
    A.i('v_lshrrev_b32 v%d, 1, v%d' % (t0, V_G))
    A.i('v_lshlrev_b32 v%d, 4, v%d' % (t0, t0))
    A.i('v_and_b32 v%d, 1, v%d' % (vA1, V_G))
    A.i('v_lshl_add_u32 v%d, v%d, 2, v%d' % (t0, vA1, t0))
    A.i('v_add_u32 v%d, v%d, v%d' % (t0, t0, V_R))
    A.i('s_and_b32 s%d, s%d, 3' % (S_T0, S_W))
    A.i('s_lshr_b32 s%d, s%d, 2' % (S_T1, S_W))
    A.i('s_mul_i32 s%d, s%d, 80' % (S_T2, S_T0))
    A.i('v_mul_u32_u24 v%d, %d, v%d' % (vA0, PK_RS, t0))
    A.i('v_lshl_add_u32 v%d, v%d, 3, v%d' % (vA0, V_C, vA0))
    A.i('v_add_u32 v%d, s%d, v%d' % (vA0, S_T2, vA0))
    A.i('v_add_u32 v%d, %d, v%d' % (vA1, 128 * PK_RS, vA0))
    A.i('s_mul_i32 s%d, s%d, 40' % (S_T2, S_T0))
    A.i('s_lshl_b32 s%d, s%d, 5' % (S_KX, S_T1))
    A.i('s_add_u32 s%d, s%d, s%d' % (S_T2, S_T2, S_KX))
    A.i('s_add_u32 s%d, s%d, %d' % (S_T2, S_T2, PV_OFF))
    A.i('v_mul_u32_u24 v%d, %d, v%d' % (vB, PV_RS, t0))
    A.i('v_lshl_add_u32 v%d, v%d, 3, v%d' % (vB, V_C, vB))
    A.i('v_add_u32 v%d, s%d, v%d' % (vB, S_T2, vB))
    ONES, DK, DZ, FR = 16, 20, 32, 44
    for k in range(4):
        A.i('v_mov_b32 v%d, 0x3f803f80' % (ONES + k))

    def kv_reads(kk):
        f = FR + (kk % 4) * 16
        for mt in range(3):
            for jh in range(2):
                A.i('ds_read_b64_tr_b16 %s, v%d offset:%d' % (
                    vr(f + 4 * mt + 2 * jh, 2), vA0 if kk < 4 else vA1,
                    (32 * (kk % 4) + 8 * jh) * PK_RS + 32 * mt), tag=('kf', kk))
        for jh in range(2):
            A.i('ds_read_b64_tr_b16 %s, v%d offset:%d' % (vr(f + 12 + 2 * jh, 2), vB, (32 * kk + 8 * jh) * PV_RS),
                tag=('kf', kk))

    def kv_mfma(k2, withz):
        A.wait_lg(('kf', k2))
        f2 = FR + (k2 % 4) * 16
        for mt in range(3):
            c = '0' if k2 == 0 else vr(DK + 4 * mt, 4)
            A.i('v_mfma_f32_16x16x32_bf16 %s, %s, %s, %s' % (vr(DK + 4 * mt, 4), vr(f2 + 4 * mt, 4), vr(f2 + 12, 4), c))
            if withz:
                c = '0' if k2 == 0 else vr(DZ + 4 * mt, 4)
                A.i('v_mfma_f32_16x16x32_bf16 %s, %s, %s, %s' % (vr(DZ + 4 * mt, 4), vr(f2 + 4 * mt, 4), vr(ONES, 4), c))

    kv_reads(0); kv_reads(1)
    va, vb, vza, vzb, vbig, vm, vj = 112, 113, 114, 115, 116, 117, 118
    A.i('s_lshl_b32 s%d, s%d, 5' % (S_T2, S_RB))
    A.i('s_lshl_b32 s%d, s%d, 2' % (S_KX, S_SUB))
    A.i('s_add_u32 s%d, s%d, s%d' % (S_T2, S_T2, S_KX))
    A.i('s_add_u32 s%d, s%d, s%d' % (S_T2, S_T2, S_T0))
    A.i('s_mul_i32 s%d, s%d, 5120' % (S_T2, S_T2))
    A.i('v_mov_b32 v%d, 0x%x' % (vbig, BIG))
    A.i('s_lshl_b32 s%d, s%d, 1' % (S_KX, S_T1))
    A.i('v_lshlrev_b32 v%d, s%d, v%d' % (vm, S_KX, V_L))
    A.i('v_and_b32 v%d, 1, v%d' % (vj, V_G))
    A.i('v_lshlrev_b32 v%d, 2, v%d' % (vj, vj))
    A.i('v_lshrrev_b32 v%d, 1, v%d' % (t0, V_G))
    A.i('v_lshl_add_u32 v%d, v%d, 7, v%d' % (t0, t0, vj))
    A.i('s_lshl_b32 s%d, s%d, 9' % (S_KX, S_T1))
    A.i('v_lshl_add_u32 v%d, v%d, 3, v%d' % (va, vm, t0))
    A.i('v_add_u32 v%d, s%d, v%d' % (va, S_KX, va))
    A.i('v_lshlrev_b32 v%d, 2, v%d' % (va, va))
    A.i('s_lshl_b32 s%d, s%d, 7' % (S_KX, S_T1))
    A.i('s_add_u32 s%d, s%d, 1024' % (S_KX, S_KX))
    A.i('v_lshl_add_u32 v%d, v%d, 3, v%d' % (vb, vm, vj))
    A.i('v_add_u32 v%d, s%d, v%d' % (vb, S_KX, vb))
    A.i('v_lshlrev_b32 v%d, 2, v%d' % (vb, vb))
    A.i('v_cmp_gt_u32 vcc, 16, v%d' % vm)
    A.i('v_cndmask_b32 v%d, v%d, v%d, vcc' % (va, vbig, va))
    A.i('v_cndmask_b32 v%d, v%d, v%d, vcc' % (vb, vbig, vb))
    A.i('v_cmp_gt_u32 vcc, 2, v%d' % V_G)
    A.i('v_cndmask_b32 v%d, v%d, v%d, vcc' % (vb, vbig, vb))
    A.i('v_lshl_add_u32 v%d, v%d, 3, v%d' % (vza, V_L, t0))
    A.i('v_add_u32 v%d, 512, v%d' % (vza, vza))
    A.i('v_lshlrev_b32 v%d, 2, v%d' % (vza, vza))
    A.i('v_lshl_add_u32 v%d, v%d, 3, v%d' % (vzb, V_L, vj))
    A.i('v_add_u32 v%d, 1152, v%d' % (vzb, vzb))
    A.i('v_lshlrev_b32 v%d, 2, v%d' % (vzb, vzb))
    A.i('v_cndmask_b32 v%d, v%d, v%d, vcc' % (vzb, vbig, vzb))
    A.i('v_cmp_eq_u32 vcc, 1, v%d' % V_C)
    A.i('v_cndmask_b32 v%d, v%d, v%d, vcc' % (vza, vbig, vza))
    A.i('v_cndmask_b32 v%d, v%d, v%d, vcc' % (vzb, vbig, vzb))
    A.i('s_cmp_eq_u32 s%d, 1' % S_T1)
    A.i('s_cselect_b32 s%d, s%d, 0x%x' % (S_KX, S_T2, BIG))
    A.fence()
    A.i('s_cbranch_scc1 L_k1_kv_z')
    q0 = (list(A.lgq), list(A.vmq))
    for withz in (False, True):
        if withz:
            A.raw('L_k1_kv_z:')
            A.hist = []
            A.lgq, A.vmq = list(q0[0]), list(q0[1])
        for kk in range(8):
            if kk + 2 < 8:
                kv_reads(kk + 2)
            kv_mfma(kk, withz)
        for mt in range(3):
            A.i('buffer_store_dwordx4 %s, v%d, s[%d:%d], s%d offen offset:%d' % (
                vr(DK + 4 * mt, 4), va if mt < 2 else vb, S_O, S_O + 3, S_T2, 1024 * mt if mt < 2 else 0), tag='st')
            if withz:
                A.i('buffer_store_dwordx4 %s, v%d, s[%d:%d], s%d offen offset:%d' % (
                    vr(DZ + 4 * mt, 4), vza if mt < 2 else vzb, S_O, S_O + 3, S_T2, 1024 * mt if mt < 2 else 0), tag='st')
        A.stamp(13)
        A.stamp_end(38, 39, WS_STAMP, S_W, 8)
        A.i('s_endpgm')


def k1(A):
    A.raw('.globl k1_kernel\n.p2align 8\n.type k1_kernel,@function\nk1_kernel:')
    A.i('s_cmp_ge_u32 s2, 256')
    A.i('s_cbranch_scc1 L_k1_exit')
    A.i('s_load_dwordx16 s[16:31], s[0:1], 0')
    A.i('s_load_dwordx8 s[32:39], s[0:1], 64')
    A.i('s_and_b32 s%d, s2, 7' % S_T0)
    A.i('s_lshr_b32 s%d, s2, 3' % S_T1)
    A.i('s_mul_i32 s3, s%d, 30' % S_T0)
    A.i('s_add_u32 s%d, s3, s%d' % (S_IDX, S_T1))
    A.i('s_lshr_b32 s%d, s%d, 3' % (S_C, S_IDX))
    A.i('s_and_b32 s%d, s%d, 7' % (S_RB, S_IDX))
    ra, rc = [int(v) for v in os.environ.get('ROT', '1,3').split(',')]
    A.i('s_mul_i32 s%d, s%d, %d' % (S_OFF, S_C, rc))
    A.i('s_mul_i32 s%d, s%d, %d' % (S_T2, S_RB, ra))
    A.i('s_add_u32 s%d, s%d, s%d' % (S_OFF, S_OFF, S_T2))
    A.i('s_mul_i32 s%d, s%d, 205' % (S_T2, S_OFF))
    A.i('s_lshr_b32 s%d, s%d, 11' % (S_T2, S_T2))
    A.i('s_mul_i32 s%d, s%d, 10' % (S_T2, S_T2))
    A.i('s_sub_u32 s%d, s%d, s%d' % (S_OFF, S_OFF, S_T2))
    A.i('s_lshl_b32 s%d, s%d, 1' % (S_SUB, S_T0))
    A.i('s_add_u32 s%d, s%d, s%d' % (S_SUB, S_SUB, S_T1))
    A.i('s_sub_u32 s%d, s%d, 30' % (S_SUB, S_SUB))
    A.i('v_lshrrev_b32 v1, 6, v0')
    A.i('v_readfirstlane_b32 s%d, v1' % S_W)
    A.i('v_and_b32 v0, 63, v0')
    A.i('v_and_b32 v%d, 15, v0' % V_L)
    A.i('v_lshrrev_b32 v%d, 4, v0' % V_G)
    A.i('v_bfe_u32 v%d, v0, 2, 2' % V_R)
    A.i('v_and_b32 v%d, 3, v0' % V_C)
    A.i('s_and_b32 s%d, s%d, 3' % (S_WM, S_W))
    A.i('s_lshr_b32 s%d, s%d, 2' % (S_WN, S_W))
    A.i('s_waitcnt lgkmcnt(0)')
    srd(A, S_X, 16, 17, 2048 * 1280)
    A.fence()
    A.i('s_cmp_ge_u32 s%d, 30' % S_T1)
    A.i('s_cbranch_scc1 L_k1_rp')
    A.i('s_cmp_lt_u32 s%d, 8' % S_C)
    A.i('s_cbranch_scc1 L_k1_kv')
    A.i('s_cmp_lt_u32 s%d, 12' % S_C)
    A.i('s_cbranch_scc1 L_k1_q')
    for role in ('gu', 'q', 'kv'):
        k1_role(A, role)
        k1_loader(A, role)
    k1_repack(A)
    A.raw('L_k1_exit:')
    A.i('s_endpgm')


def kd(name, vgpr, accum, sgpr=102):
    return '''.amdhsa_kernel %s
  .amdhsa_next_free_vgpr %d
  .amdhsa_next_free_sgpr %d
  .amdhsa_accum_offset %d
  .amdhsa_group_segment_fixed_size 0
  .amdhsa_kernarg_size 96
  .amdhsa_user_sgpr_count 2
  .amdhsa_user_sgpr_kernarg_segment_ptr 1
  .amdhsa_system_sgpr_workgroup_id_x 1
.end_amdhsa_kernel
''' % (name, vgpr, sgpr, accum)


if __name__ == '__main__':
    out = sys.argv[1] if len(sys.argv) > 1 else 'k.s'
    only1 = len(sys.argv) > 2 and sys.argv[2] == 'k1'
    A = Asm()
    st = os.environ.get('STAMP', '')
    if '1' in st:
        A.stamp_on = True
        A.stamp_v = 19
        A.stamp_s = 76
    A.raw('; @launch kernel=k1_kernel grid=(256,1,1) block=(768,1,1) lds=%d' % (K1_LDS + 1024))
    if not only1:
        from gen2 import k2, K2_LDS, K2_VGPR, K2_ACC
        A.raw('; @launch kernel=k2_kernel grid=(256,1,1) block=(256,1,1) lds=%d' % K2_LDS)
    A.raw('.amdgcn_target "amdgcn-amd-amdhsa--gfx950"\n.text')
    k1(A)
    if not only1:
        A.hist = []; A.vmq = []; A.lgq = []
        A.stamp_on = '2' in st
        A.stamp_v = 255
        A.stamp_s = None
        k2(A)
    A.raw('.section .rodata,"a"\n.p2align 6')
    A.raw(kd('k1_kernel', K1_VGPR, K1_VGPR))
    if not only1:
        A.raw('.p2align 6')
        A.raw(kd('k2_kernel', K2_VGPR, K2_ACC))
    open(out, 'w').write(A.text())
    print('instrs', A.count, 'nops', A.nops)
```

```python
import sys, math, os
sys.path.insert(0, 'dev')
from asmlib import *
from gen import (srd, f32bits, WS_H, WS_PQ, WS_KVP, WS_KVF, WS_FL, WS_G, WS_WF, WS_STAMP, H_BYTES, PQ_BYTES, KVP_BYTES,
                 KVF_BYTES, WF_BYTES, BIG)

RSF = 336
K2_LDS = 60 * 1024
K2_ACC = 256
K2_VGPR = 512

S_RB, S_CB, S_W = 4, 5, 6
S_H, S_PQ, S_KVP, S_KVF, S_FL, S_G, S_WF, S_OUT = 40, 44, 48, 52, 56, 60, 64, 72
S_A0, S_SA, S_SW, S_T0, S_T1, S_T2, S_T3, S_PSEL, S_CNT, S_HB, S_PQB, S_HB0, S_WB0 = 76, 77, 78, 80, 81, 82, 83, 84, 85, 86, 87, 88, 89

V_L, V_G, V_R, V_C = 1, 2, 3, 4
V_A = 5
V_PQ0 = 10
V_PQ1 = 14
V_L16 = 18
V_L16B = 19
V_KV2 = 20
V_P16, V_P8 = 21, 22
V_GT = 28
V_T = 32
V_ACC = 40
V_OOP = 120
V_D = 200
V_SV = 232
V_FLG = 252

A_R = 0
A_HD = 144


def chunk_decode(A, inst, vpos, vch, tmp):
    A.i('v_add_u32 v%d, %d, v0' % (vch, 64 * inst))
    A.i('v_mul_u32_u24 v%d, 205, v%d' % (vpos, vch))
    A.i('v_lshrrev_b32 v%d, 11, v%d' % (vpos, vpos))
    A.i('v_mul_u32_u24 v%d, 10, v%d' % (tmp, vpos))
    A.i('v_sub_u32 v%d, v%d, v%d' % (vch, vch, tmp))


def producer_loads(A, sidx, ssel, base, tag):
    A.i('s_mul_i32 s%d, s%d, 640' % (S_T0, sidx))
    A.i('s_add_u32 s%d, s%d, s%d' % (S_T0, S_T0, ssel))
    for rb in range(8):
        A.i('buffer_load_dwordx4 %s, v%d, s[%d:%d], s%d offen' % (vr(base + 4 * rb, 4), V_P16, S_KVP, S_KVP + 3, S_T0),
            tag=tag)
        if rb < 7:
            A.i('s_add_u32 s%d, s%d, %d' % (S_T0, S_T0, 32 * 5120))


def producer_store(A, sidx, ssel, base, tag):
    for step in (16, 8, 4):
        for k in range(step):
            A.i('v_add_f32 v%d, v%d, v%d' % (base + k, base + k, base + step + k))
    A.i('v_cvt_pk_bf16_f32 v%d, v%d, v%d' % (base, base, base + 1))
    A.i('v_cvt_pk_bf16_f32 v%d, v%d, v%d' % (base + 1, base + 2, base + 3))
    A.i('s_mul_i32 s%d, s%d, 320' % (S_T0, sidx))
    A.i('s_add_u32 s%d, s%d, s%d' % (S_T0, S_T0, ssel))
    A.i('buffer_store_dwordx2 %s, v%d, s[%d:%d], s%d offen sc1' % (vr(base, 2), V_P8, S_KVF, S_KVF + 3, S_T0), tag=tag)


def k2(A):
    A.raw('.globl k2_kernel\n.p2align 8\n.type k2_kernel,@function\nk2_kernel:')
    A.i('s_cmp_ge_u32 s2, 256')
    A.i('s_cbranch_scc1 L_k2_exit')
    A.i('s_load_dwordx8 s[32:39], s[0:1], 64')
    A.i('s_and_b32 s3, s2, 7')
    A.i('s_lshr_b32 s7, s2, 3')
    A.i('s_lshl_b32 s3, s3, 2')
    A.i('s_lshr_b32 s%d, s7, 3' % S_RB)
    A.i('s_add_u32 s%d, s%d, s3' % (S_RB, S_RB))
    A.i('s_and_b32 s%d, s7, 7' % S_CB)
    A.i('v_lshrrev_b32 v1, 6, v0')
    A.i('v_readfirstlane_b32 s%d, v1' % S_W)
    A.i('v_and_b32 v0, 63, v0')
    A.i('v_and_b32 v%d, 15, v0' % V_L)
    A.i('v_lshrrev_b32 v%d, 4, v0' % V_G)
    t0, t1, t2, t3 = V_T, V_T + 1, V_T + 2, V_T + 3
    A.i('v_lshlrev_b32 v%d, 4, v0' % V_L16)
    A.i('v_add_u32 v%d, 4096, v%d' % (V_L16B, V_L16))
    for st in range(4):
        A.i('v_add_u32 v%d, %d, v%d' % (V_A + st, st * 54 * 1024, V_L16))
    A.i('s_mul_i32 s%d, s%d, 14' % (S_A0, S_W))
    A.i('s_cmp_eq_u32 s%d, 3' % S_W)
    A.i('s_cselect_b32 s%d, 1, 0' % S_T0)
    A.i('s_sub_u32 s%d, s%d, s%d' % (S_A0, S_A0, S_T0))
    A.i('s_mul_i32 s%d, s%d, 216' % (S_HB0, S_RB))
    A.i('s_add_u32 s%d, s%d, s%d' % (S_HB0, S_HB0, S_A0))
    A.i('s_lshl_b32 s%d, s%d, 10' % (S_HB0, S_HB0))
    A.i('s_mul_i32 s%d, s%d, 74' % (S_WB0, S_CB))
    A.i('s_add_u32 s%d, s%d, s%d' % (S_T0, S_WB0, S_A0))
    A.i('s_mul_i32 s%d, s%d, 5120' % (S_SW, S_T0))
    A.i('s_mov_b32 s%d, s%d' % (S_SA, S_HB0))
    A.i('s_waitcnt lgkmcnt(0)')
    srd(A, S_WF, 38, 39, WF_BYTES, WS_WF)
    srd(A, S_H, 38, 39, H_BYTES, WS_H)
    A.stamp(0)
    A.stamp_rt(8)

    def ld_w(n, soff):
        b = A_R + (n % 4) * 36
        for t in range(5):
            A.i('buffer_load_dwordx4 %s, v%d, s[%d:%d], s%d offen offset:%d' % (
                ar(b + 4 * t, 4), V_L16 if t < 4 else V_L16B, S_WF, S_WF + 3, soff, 1024 * t if t < 4 else 0), tag=('w', n))

    def L_H(n):
        if n == 13:
            A.i('s_cmp_ge_u32 s%d, 2' % S_W)
            A.i('s_cselect_b32 s%d, 0x%x, s%d' % (S_SA, BIG, S_SA))
            A.i('s_cselect_b32 s%d, 0x%x, s%d' % (S_SW, BIG, S_SW))
        ld_w(n, S_SW)
        b = A_R + (n % 4) * 36 + 20
        for st in range(4):
            A.i('buffer_load_dwordx4 %s, v%d, s[%d:%d], s%d offen' % (ar(b + st * 4, 4), V_A + st, S_H, S_H + 3, S_SA),
                tag=('w', n))
        if n < 13:
            A.i('s_add_u32 s%d, s%d, 1024' % (S_SA, S_SA))
            A.i('s_add_u32 s%d, s%d, 5120' % (S_SW, S_SW))

    L_H(0)
    L_H(1)
    A.i('v_bfe_u32 v%d, v0, 2, 2' % V_R)
    A.i('v_and_b32 v%d, 3, v0' % V_C)
    srd(A, S_PQ, 38, 39, PQ_BYTES, WS_PQ)
    srd(A, S_KVP, 38, 39, KVP_BYTES, WS_KVP)
    srd(A, S_KVF, 38, 39, KVF_BYTES, WS_KVF)
    srd(A, S_FL, 38, 39, 1024, WS_FL)
    srd(A, S_G, 38, 39, 8192, WS_G)
    srd(A, S_OUT, 34, 35, 2048 * 1280)
    A.i('v_mov_b32 v%d, 0x%x' % (t2, BIG))
    A.i('v_cmp_gt_u32 vcc, 40, v0')
    A.i('v_lshlrev_b32 v%d, 3, v0' % t1)
    A.i('v_cndmask_b32 v%d, v%d, v%d, vcc' % (V_P16, t2, V_L16))
    A.i('v_cndmask_b32 v%d, v%d, v%d, vcc' % (V_P8, t2, t1))
    A.i('s_cmp_eq_u32 s%d, 0' % S_W)
    A.i('s_cselect_b32 s%d, 0, 0x%x' % (S_PSEL, BIG))
    producer_loads(A, 2, S_PSEL, V_D, 'pl')
    L_H(2)
    A.i('v_cmp_eq_u32 vcc, 0, v%d' % V_G)
    A.i('v_cndmask_b32 v%d, v%d, v%d, vcc' % (V_KV2, t2, V_L16))
    A.i('v_lshlrev_b32 v%d, 4, v%d' % (t0, V_L))
    A.i('v_add_u32 v%d, 1024, v%d' % (t0, t0))
    for st in range(4):
        A.i('v_add_u32 v%d, %d, v%d' % (V_PQ0 + st, st * 32 * 1280, V_L16))
        A.i('v_add_u32 v%d, %d, v%d' % (V_PQ1 + st, st * 32 * 1280, t0))
    A.i('s_lshl_b32 s%d, s%d, 7' % (S_PQB, S_RB))
    A.i('s_lshl_b32 s%d, s%d, 3' % (S_T0, S_W))
    A.i('s_add_u32 s%d, s%d, s%d' % (S_PQB, S_PQB, S_T0))
    A.i('s_mul_i32 s%d, s%d, 1280' % (S_PQB, S_PQB))
    A.i('s_mul_i32 s%d, s%d, %d' % (S_HB, S_W, 8 * 2560))
    A.i('s_lshl_b32 s%d, s%d, 8' % (S_T0, S_RB))
    A.i('v_lshlrev_b32 v%d, 2, v%d' % (t3, V_L))
    for st in range(4):
        A.i('buffer_load_dword v%d, v%d, s[%d:%d], s%d offen offset:%d' % (V_GT + st, t3, S_G, S_G + 3, S_T0, 64 * st), tag='g')

    def hslot(j):
        return [A_HD, A_HD + 48, 0][j % 3]

    def L_Opq(j):
        b = hslot(j)
        A.i('s_add_u32 s%d, s%d, %d' % (S_T1, S_PQB, j * 1280))
        for st in range(4):
            A.i('buffer_load_dwordx4 %s, v%d, s[%d:%d], s%d offen' % (
                ar(b + st * 8, 4), V_PQ0 + st, S_PQ, S_PQ + 3, S_T1), tag=('o', j))
            A.i('buffer_load_dwordx4 %s, v%d, s[%d:%d], s%d offen' % (
                ar(b + st * 8 + 4, 4), V_PQ1 + st, S_PQ, S_PQ + 3, S_T1), tag=('o', j))

    def L_Okv(j):
        b = hslot(j) + 32
        A.i('s_add_u32 s%d, s%d, %d' % (S_T0, S_HB, j * 2560))
        for k in range(4):
            A.i('buffer_load_dwordx4 %s, v%d, s[%d:%d], s%d offen offset:%d sc1' % (
                ar(b + 4 * k, 4), V_L16 if k < 2 else V_KV2, S_KVF, S_KVF + 3, S_T0, [0, 1024, 2048, 2304][k]), tag=('o', j))

    def L_W(e):
        A.i('s_mul_i32 s%d, s%d, 5' % (S_T0, S_W))
        A.i('s_add_u32 s%d, s%d, s%d' % (S_T0, S_T0, S_WB0))
        A.i('s_add_u32 s%d, s%d, %d' % (S_T0, S_T0, 54 + e))
        A.i('s_mul_i32 s%d, s%d, 5120' % (S_T0, S_T0))
        b = wslot(e)
        for t in range(5):
            A.i('buffer_load_dwordx4 %s, v%d, s[%d:%d], s%d offen offset:%d' % (
                ar(b + 4 * t, 4), V_L16 if t < 4 else V_L16B, S_WF, S_WF + 3, S_T0, 1024 * t if t < 4 else 0), tag=('wo', e))

    def wslot(e):
        return [48, 68, 88, 108, 48][e]

    def acc(st, t):
        return V_ACC + (st * 5 + t) * 4

    def C_G(wbase, bsrc, first):
        for t in range(5):
            for st in range(4):
                c = '0' if first else vr(acc(st, t), 4)
                A.i('v_mfma_f32_16x16x32_bf16 %s, %s, %s, %s' % (vr(acc(st, t), 4), ar(wbase + 4 * t, 4), bsrc(st), c))

    for n in range(14):
        if n + 3 <= 13:
            L_H(n + 3)
        if n == 1:
            A.wait_vm('pl')
            producer_store(A, 2, S_PSEL, V_D, 'ps')
        if n == 3:
            A.wait_vm(('w', 5))
            A.i('v_mov_b32 v%d, 0x%x' % (t0, BIG))
            A.i('v_cmp_eq_u32 vcc, 0, v0')
            A.i('v_cndmask_b32 v%d, v%d, v0, vcc' % (t0, t0))
            A.i('v_mov_b32 v%d, 1' % t1)
            A.i('s_lshl_b32 s%d, s2, 2' % S_T0)
            A.i('s_add_u32 s%d, s%d, s%d' % (S_T0, S_T0, S_PSEL))
            A.i('buffer_store_dword v%d, v%d, s[%d:%d], s%d offen sc1' % (t1, t0, S_FL, S_FL + 3, S_T0), tag='fs')
        if n == 9:
            A.i('v_lshlrev_b32 v%d, 2, v0' % t2)
            A.i('s_lshl_b32 s%d, s%d, 8' % (S_T3, S_W))
            A.i('buffer_load_dword v%d, v%d, s[%d:%d], s%d offen sc1' % (V_FLG, t2, S_FL, S_FL + 3, S_T3), tag='fl')
        if n == 11:
            L_Opq(0)
            A.wait_vm('fl')
            A.i('v_cmp_ne_u32 vcc, 0, v%d' % V_FLG)
            A.fence()
            A.i('s_cmp_eq_u64 vcc, exec')
            A.i('s_cbranch_scc1 L_k2_ready')
            A.i('s_mov_b32 s%d, 0' % S_CNT)
            A.raw('L_k2_poll:')
            A.i('s_sleep 8')
            A.i('buffer_load_dword v%d, v%d, s[%d:%d], s%d offen sc1' % (V_FLG, t2, S_FL, S_FL + 3, S_T3), tag='fl')
            A.i('s_waitcnt vmcnt(0)')
            A.i('v_cmp_ne_u32 vcc, 0, v%d' % V_FLG)
            A.fence()
            A.i('s_cmp_eq_u64 vcc, exec')
            A.i('s_cbranch_scc1 L_k2_ready')
            A.i('s_add_u32 s%d, s%d, 1' % (S_CNT, S_CNT))
            A.i('s_cmp_lt_u32 s%d, 2000' % S_CNT)
            A.i('s_cbranch_scc1 L_k2_poll')
            A.i('s_lshl_b32 s%d, s%d, 6' % (S_CNT, S_W))
            A.i('s_add_u32 s%d, s%d, 64' % (S_T2, S_CNT))
            A.i('s_mov_b32 s%d, 0' % S_T1)
            A.raw('L_k2_self:')
            producer_loads(A, S_CNT, S_T1, V_D, 'pl')
            A.i('s_waitcnt vmcnt(0)')
            producer_store(A, S_CNT, S_T1, V_D, 'ps')
            A.i('s_waitcnt vmcnt(0)')
            A.fence()
            A.i('s_add_u32 s%d, s%d, 1' % (S_CNT, S_CNT))
            A.i('s_cmp_lt_u32 s%d, s%d' % (S_CNT, S_T2))
            A.i('s_cbranch_scc1 L_k2_self')
            A.raw('L_k2_ready:')
            A.vmq = [t for t in A.vmq if t not in ('fl', 'pl', 'ps')]
            A.hist = []
            L_Okv(0)
        if n == 12:
            L_Opq(1); L_Okv(1)
        A.wait_vm(('w', n))
        b = A_R + (n % 4) * 36
        C_G(b, lambda st: ar(b + 20 + st * 4, 4), n == 0)
        if n in (0, 5, 10):
            A.stamp(1 + n // 5)
    A.stamp(4)
    L_W(0)
    L_Opq(2); L_Okv(2)
    L_W(1)
    A.wait_vm('g')
    OP = V_OOP
    O4 = V_OOP + 32
    for j in range(8):
        b = hslot(j)
        p = j // 2
        A.wait_vm(('o', j))
        for st in range(4):
            d = V_D + st * 8
            for mt in range(2):
                A.i('v_mfma_f32_16x16x32_bf16 %s, %s, %s, 0' % (vr(d + 4 * mt, 4), ar(b + 32 + 4 * mt, 4), ar(b + st * 8, 4)))
            for mt in range(2):
                A.i('v_mfma_f32_16x16x32_bf16 %s, %s, %s, %s' % (vr(d + 4 * mt, 4), ar(b + 40 + 4 * mt, 4),
                                                               ar(b + st * 8 + 4, 4), vr(d + 4 * mt, 4)))
        if j + 3 < 8:
            L_Opq(j + 3); L_Okv(j + 3)
        if j in (1, 3):
            L_W(2 + j // 2)
        if j == 4:
            L_W(4)
        if j == 0:
            for st in range(4):
                A.i('v_sub_f32 v%d, 1.0, v%d' % (V_T + 2 * st, V_GT + st))
            for st in range(4):
                for k in range(0, 20, 2):
                    A.i('v_pk_mul_f32 %s, %s, %s op_sel_hi:[1,0]' % (vr(acc(st, 0) + k, 2), vr(acc(st, 0) + k, 2), vr(V_T + 2 * st, 2)))
        for st in range(4):
            d = V_D + st * 8
            A.i('v_add_f32 v%d, 0x%08x, v%d' % (d + 6, f32bits(1e-6), d + 5))
        for st in range(4):
            d = V_D + st * 8
            A.i('v_rcp_f32 v%d, v%d' % (d + 6, d + 6))
        for st in range(4):
            d = V_D + st * 8
            A.i('v_mul_f32 v%d, v%d, v%d' % (d + 6, d + 6, V_GT + st))
        for st in range(4):
            d = V_D + st * 8
            for h in range(2):
                A.i('v_pk_mul_f32 %s, %s, %s op_sel_hi:[1,0]' % (vr(d + 2 * h, 2), vr(d + 2 * h, 2), vr(d + 6, 2)))
            A.i('v_mul_f32 v%d, v%d, v%d' % (V_SV + st if j % 2 == 0 else d + 4, d + 4, d + 6))
        for st in range(4):
            d = V_D + st * 8
            o_ = OP + ((p % 2) * 4 + st) * 4 + 2 * (j % 2)
            A.i('v_cvt_pk_bf16_f32 v%d, v%d, v%d' % (o_, d, d + 1))
            A.i('v_cvt_pk_bf16_f32 v%d, v%d, v%d' % (o_ + 1, d + 2, d + 3))
            if j % 2 == 1:
                A.i('v_cvt_pk_bf16_f32 v%d, v%d, v%d' % (O4 + st * 4 + p, V_SV + st, d + 4))
        if j % 2 == 1:
            A.wait_vm(('wo', p))
            C_G(wslot(p), lambda st: vr(OP + ((p % 2) * 4 + st) * 4, 4), False)
    A.stamp(5)
    A.wait_vm(('wo', 4))
    C_G(wslot(4), lambda st: vr(O4 + st * 4, 4), False)
    A.stamp(6)

    VW, VRD, VO, VO2 = V_A, V_A + 1, V_A + 2, V_A + 3
    A.i('s_mul_i32 s%d, s%d, 15360' % (S_T0, S_W))
    A.i('v_add_u32 v%d, s%d, v%d' % (VRD, S_T0, V_L16))
    A.i('s_lshl_b32 s%d, s%d, 4' % (S_T0, S_W))
    A.i('s_lshl_b32 s%d, s%d, 6' % (S_T1, S_RB))
    A.i('s_add_u32 s%d, s%d, s%d' % (S_T1, S_T1, S_T0))
    A.i('v_add_u32 v%d, s%d, v%d' % (t0, S_T1, V_L))
    A.i('v_mul_u32_u24 v%d, 1280, v%d' % (t0, t0))
    A.i('s_mul_i32 s%d, s%d, 160' % (S_T2, S_CB))
    A.i('v_add_u32 v%d, s%d, v%d' % (t0, S_T2, t0))
    A.i('v_lshl_add_u32 v%d, v%d, 4, v%d' % (VO, V_G, t0))
    A.i('v_lshl_add_u32 v%d, v%d, 3, v%d' % (VO2, V_G, t0))
    A.fence()
    for w in range(1, 4):
        A.i('s_cmp_eq_u32 s%d, %d' % (S_W, w))
        A.i('s_cbranch_scc1 L_k2_red%d' % w)
    R0 = V_OOP
    for w in range(4):
        if w:
            A.raw('L_k2_red%d:' % w)
        A.hist = []; A.lgq = []
        for d in range(1, 4):
            dst = (w + d) & 3
            slot = (w - dst - 1) & 3
            for t in range(5):
                A.i('ds_write_b128 v%d, %s offset:%d' % (V_L16, vr(acc(dst, t), 4), (dst * 15 + slot * 5 + t) * 1024), tag='rw')
        A.wait_all(vm=False)
        A.i('s_barrier')
        for k in range(15):
            A.i('ds_read_b128 %s, v%d offset:%d' % (vr(R0 + 4 * k, 4), VRD, 1024 * k), tag=('rr', k))
        a = acc(w, 0)
        for sl in range(3):
            for t in range(5):
                A.wait_lg(('rr', sl * 5 + t))
                for h in range(2):
                    A.i('v_pk_add_f32 %s, %s, %s' % (vr(a + 4 * t + 2 * h, 2), vr(a + 4 * t + 2 * h, 2),
                                                    vr(R0 + (sl * 5 + t) * 4 + 2 * h, 2)))
        for k in range(10):
            A.i('v_cvt_pk_bf16_f32 v%d, v%d, v%d' % (V_D + k, a + 2 * k, a + 2 * k + 1))
        A.i('buffer_store_dwordx4 %s, v%d, s[%d:%d], 0 offen' % (vr(V_D, 4), VO, S_OUT, S_OUT + 3), tag='st')
        A.i('buffer_store_dwordx4 %s, v%d, s[%d:%d], 0 offen offset:64' % (vr(V_D + 4, 4), VO, S_OUT, S_OUT + 3), tag='st')
        A.i('buffer_store_dwordx2 %s, v%d, s[%d:%d], 0 offen offset:128' % (vr(V_D + 8, 2), VO2, S_OUT, S_OUT + 3), tag='st')
        if w < 3:
            A.i('s_branch L_k2_fin')
    A.raw('L_k2_fin:')
    A.hist = []
    A.stamp(7)
    A.stamp_end(38, 39, WS_STAMP + 0x80000, S_W, 4)
    A.raw('L_k2_exit:')
    A.i('s_endpgm')
```

```python
import sys, math, os
sys.path.insert(0, 'dev')
from asmlib import *

NAME = 'gated_mix__linear_kernel_hedgehog__geglu_ffn__prompt'
WS_H = 0
WS_PQ = 0x700000
WS_KVP = 0xC00000
WS_KVF = 0xE00000
WS_FL = 0xE20000
WS_G = 0xE30000
WS_STAMP = 0xF00000
WS_WF = 0x1000000
WS_OF = 0x1400000
OF_BYTES = 128 * 20 * 1024
FL_BYTES = 1024
WF_BYTES = 8 * 74 * 5 * 1024
H_BYTES = 2048 * 1728 * 2
PQ_BYTES = 2048 * 1280 * 2
KVP_BYTES = 8 * 32 * 1280 * 4
KVF_BYTES = 32 * 1280 * 2
LOG2E = 1.4426950408889634
BIG = 0x40000000


SC = ' sc1'


def f32bits(x):
    import struct
    return struct.unpack('<I', struct.pack('<f', x))[0]


def srd(A, d, lo, hi, nrec, add=0):
    if add:
        A.i('s_add_u32 s%d, s%d, 0x%x' % (d, lo, add))
        A.i('s_addc_u32 s%d, s%d, 0' % (d + 1, hi))
        A.i('s_and_b32 s%d, s%d, 0xffff' % (d + 1, d + 1))
    else:
        A.i('s_mov_b32 s%d, s%d' % (d, lo))
        A.i('s_and_b32 s%d, s%d, 0xffff' % (d + 1, hi))
    A.i('s_mov_b32 s%d, 0x%x' % (d + 2, nrec))
    A.i('s_mov_b32 s%d, 0x20000' % (d + 3))


NBUF = 5
XBUF = 32768
WRING = 3 * XBUF
WPHI = 151552
GWL = WPHI + 8192
K1_LDS = 159744
K1_VGPR = 168
PK_OFF, PK_RS = 0, 336
PV_OFF, PV_RS = 86016, 176
HO_OFF = 131072

S_IDX, S_C, S_RB, S_W = 3, 4, 5, 6
S_X, S_WT, S_O, S_P, S_GW, S_G, S_FL, S_WU = 40, 44, 48, 52, 56, 60, 64, 68
S_T0, S_T1, S_T2, S_CL2E, S_SUB = 72, 73, 74, 98, 99
S_NXT, S_WR, S_KX, S_KW, S_CNT, S_WM, S_WN = 8, 9, 10, 11, 12, 15, 7

V_XA = 1
V_XB = 3
V_WA = 5
V_WB = 8
V_GWA = 7
V_L, V_G, V_R, V_C = 10, 11, 12, 13
V_T = 14
S_XN = 13
S_OFF = 14
V_ACC = 16


def role_params(role):
    gu = role == 'gu'
    kv = role == 'kv'
    P = dict(gu=gu, kv=kv)
    P['nsub'] = 4 if gu else 2
    P['CH'] = 6 if gu else 10
    P['RS'] = P['CH'] * 16
    P['cstride'] = 8 if gu else 40
    P['tstride'] = 32 if gu else 8
    P['rowbytes'] = 3456 if gu else 3840
    P['SUBSZ'] = 32 * P['RS']
    P['BUFSZ'] = P['nsub'] * P['SUBSZ']
    P['NWI'] = P['nsub'] * 32 * P['CH'] // 64
    return P


def k1_loader(A, role):
    P = role_params(role)
    gu, kv = P['gu'], P['kv']
    BUFSZ, CH, rowbytes, NWI = P['BUFSZ'], P['CH'], P['rowbytes'], P['NWI']
    ROWS = 192 if role == 'q' else 256
    NXI = ROWS // 32
    A.label('L_k1_ld_' + role)
    A.hist = []; A.vmq = []; A.lgq = []
    t0, t1, t2, t3 = 14, 15, 1, 2
    A.i('s_setprio 3')
    A.i('s_mov_b32 s%d, 0' % S_WR)
    A.i('s_mov_b32 s%d, 0' % S_CNT)
    A.i('s_and_b32 s%d, s%d, 1' % (S_WM, S_W))
    A.i('s_cmp_ge_u32 s%d, 10' % S_W)
    A.i('s_cbranch_scc1 L_k1_ldw_' + role)

    A.i('v_and_b32 v%d, 7, v0' % t0)
    A.i('v_xor_b32 v%d, v%d, v%d' % (t0, t0, V_G))
    A.i('v_lshrrev_b32 v%d, 3, v0' % t1)
    A.i('v_mul_u32_u24 v%d, 1280, v%d' % (t1, t1))
    A.i('v_lshl_add_u32 v16, v%d, 4, v%d' % (t0, t1))
    A.i('v_xor_b32 v%d, 4, v%d' % (t0, t0))
    A.i('v_lshl_add_u32 v17, v%d, 4, v%d' % (t0, t1))
    A.i('v_add_u32 v17, %d, v17' % (8 * 1280))
    for j in range(2, NXI):
        A.i('v_add_u32 v%d, %d, v%d' % (16 + j, (j // 2) * 16 * 1280, 16 + (j & 1)))
    A.i('s_mul_i32 s%d, s%d, %d' % (S_KX, S_RB, ROWS * 1280))
    A.i('s_mul_i32 s%d, s%d, %d' % (S_T0, S_WM, ROWS // 2 * 1280))
    A.i('s_add_u32 s%d, s%d, s%d' % (S_KW, S_KX, S_T0))
    A.i('s_lshl_b32 s%d, s%d, 7' % (S_NXT, S_OFF))
    A.i('s_add_u32 s%d, s%d, s%d' % (S_KX, S_KW, S_NXT))
    A.i('s_mul_i32 s%d, s%d, %d' % (S_WN, S_WM, ROWS // 2 * 128))

    def issue_x(h):
        if h == 0:
            A.i('s_add_u32 m0, s%d, s%d' % (S_WR, S_WN))
            A.i('s_mov_b32 s%d, s%d' % (S_T0, S_KX))
        else:
            A.i('s_add_u32 m0, s%d, s%d' % (S_WR, S_WN))
            A.i('s_add_u32 m0, m0, %d' % (NXI * 1024))
            A.i('s_add_u32 s%d, s%d, %d' % (S_T0, S_KX, ROWS // 4 * 1280))
        for j in range(NXI):
            A.i('buffer_load_dwordx4 v%d, s[%d:%d], s%d offen lds' % (16 + j, S_X, S_X + 3, S_T0))
            if j < NXI - 1:
                A.i('s_add_u32 m0, m0, 1024')
        if h == 1:
            A.i('s_add_u32 s%d, s%d, 128' % (S_NXT, S_NXT))
            A.i('s_cmp_eq_u32 s%d, 1280' % S_NXT)
            A.i('s_cselect_b32 s%d, 0, s%d' % (S_NXT, S_NXT))
            A.i('s_add_u32 s%d, s%d, s%d' % (S_KX, S_KW, S_NXT))
            A.i('s_add_u32 s%d, s%d, %d' % (S_WR, S_WR, XBUF))
            A.i('s_cmp_eq_u32 s%d, %d' % (S_WR, 3 * XBUF))
            A.i('s_cselect_b32 s%d, 0, s%d' % (S_WR, S_WR))
    if os.environ.get('THR', '1') == '1':
        issue_x(0); issue_x(1)
        if not kv:
            k1_repack_setup(A)
        A.i('s_waitcnt vmcnt(0)')
        A.i('s_barrier')
        issue_x(0); issue_x(1)
    else:
        issue_x(0); issue_x(1); issue_x(0); issue_x(1)
        A.i('s_waitcnt vmcnt(16)')
        A.i('s_barrier')
    A.raw('L_k1_ldx_loop_%s:' % role)
    A.i('s_barrier')
    issue_x(0)
    A.i('s_waitcnt vmcnt(%d)' % NXI)
    A.i('s_barrier')
    issue_x(1)
    A.i('s_add_u32 s%d, s%d, 1' % (S_CNT, S_CNT))
    A.i('s_cmp_lt_u32 s%d, 8' % S_CNT)
    A.i('s_cbranch_scc1 L_k1_ldx_loop_%s' % role)
    A.i('s_barrier')
    if not kv:
        A.i('s_branch L_k1_rp')
    else:
        A.i('s_waitcnt vmcnt(0)')
        A.i('s_barrier')
        A.i('s_barrier')
        A.i('s_barrier')
        A.i('s_endpgm')

    A.raw('L_k1_ldw_%s:' % role)
    A.hist = []
    if gu:
        A.i('s_cmp_eq_u32 s%d, 0' % S_WM)
        A.i('s_cselect_b32 s%d, s26, s28' % S_T0)
        A.i('s_cselect_b32 s%d, s27, s29' % S_T1)
        srd(A, S_WT, S_T0, S_T1, 640 * 3456)
        A.i('s_mul_i32 s%d, s%d, 192' % (S_T0, S_SUB))
    else:
        srd(A, S_WT, 18, 19, 640 * 3840)
        if role == 'q':
            A.i('s_mul_i32 s%d, s%d, 320' % (S_T0, S_SUB))
            wpb = 6400
        else:
            A.i('s_mul_i32 s%d, s%d, 160' % (S_T0, S_SUB))
            A.i('s_add_u32 s%d, s%d, 1280' % (S_T0, S_T0))
            wpb = 3200
        A.i('s_mul_i32 s%d, s%d, %d' % (S_T2, S_WM, 160 if role == 'q' else 1280))
        A.i('s_add_u32 s%d, s%d, s%d' % (S_T0, S_T0, S_T2))
        A.i('s_mul_i32 s%d, s%d, %d' % (S_T2, S_SUB, wpb))
        A.i('s_add_u32 s%d, s20, s%d' % (S_P, S_T2))
        A.i('s_addc_u32 s%d, s21, 0' % (S_P + 1))
        A.i('s_and_b32 s%d, s%d, 0xffff' % (S_P + 1, S_P + 1))
        A.i('s_mov_b32 s%d, %d' % (S_P + 2, wpb))
        A.i('s_mov_b32 s%d, 0x20000' % (S_P + 3))
    CHL = 12 if gu else 10
    mulc, sh = (171, 11) if gu else (205, 11)
    NI = NWI // 2
    for inst in range(NI):
        A.i('v_add_u32 v%d, %d, v0' % (t0, 64 * inst))
        A.i('v_mul_u32_u24 v%d, %d, v%d' % (t1, mulc, t0))
        A.i('v_lshrrev_b32 v%d, %d, v%d' % (t1, sh, t1))
        A.i('v_mul_u32_u24 v%d, %d, v%d' % (t2, CHL, t1))
        A.i('v_sub_u32 v%d, v%d, v%d' % (t0, t0, t2))
        A.i('v_and_b32 v%d, 4, v%d' % (t3, t1))
        if gu:
            A.i('v_lshrrev_b32 v%d, 1, v%d' % (t2, t3))
            A.i('v_xor_b32 v%d, v%d, v%d' % (t0, t0, t2))
        A.i('v_and_b32 v%d, 0x13, v%d' % (t2, t1))
        A.i('v_lshl_or_b32 v%d, v%d, 1, v%d' % (t2, t3, t2))
        A.i('v_and_b32 v%d, 8, v%d' % (t3, t1))
        A.i('v_lshrrev_b32 v%d, 1, v%d' % (t3, t3))
        A.i('v_or_b32 v%d, v%d, v%d' % (t2, t2, t3))
        A.i('v_mul_u32_u24 v%d, %d, v%d' % (t2, rowbytes, t2))
        A.i('v_add_u32 v%d, s%d, v%d' % (t2, S_T0, t2))
        A.i('v_lshl_add_u32 v%d, v%d, 4, v%d' % (16 + inst, t0, t2))
    A.i('s_mul_i32 s%d, s%d, %d' % (S_KW, S_OFF, 64 * rowbytes))
    A.i('s_mul_i32 s%d, s%d, %d' % (S_WN, S_WM, NI * 1024))
    A.i('s_add_u32 s%d, s%d, %d' % (S_WN, S_WN, WRING))

    def issue_w():
        A.i('s_add_u32 m0, s%d, s%d' % (S_WR, S_WN))
        for j in range(NI):
            A.i('buffer_load_dwordx4 v%d, s[%d:%d], s%d offen lds' % (16 + j, S_WT, S_WT + 3, S_KW))
            if j < NI - 1:
                A.i('s_add_u32 m0, m0, 1024')
        A.i('s_add_u32 s%d, s%d, %d' % (S_KW, S_KW, 32 * rowbytes))
        A.i('s_cmp_eq_u32 s%d, %d' % (S_KW, 640 * rowbytes))
        A.i('s_cselect_b32 s%d, 0, s%d' % (S_KW, S_KW))
        A.i('s_add_u32 s%d, s%d, %d' % (S_WR, S_WR, BUFSZ))
        A.i('s_cmp_eq_u32 s%d, %d' % (S_WR, NBUF * BUFSZ))
        A.i('s_cselect_b32 s%d, 0, s%d' % (S_WR, S_WR))
    issue_w()
    if not gu:
        A.i('v_lshlrev_b32 v%d, 4, v0' % t0)
        A.i('s_lshl_b32 s%d, s%d, 12' % (S_T1, S_WM))
        A.i('s_add_u32 m0, s%d, %d' % (S_T1, WPHI))
        for j in range(4):
            A.i('buffer_load_dwordx4 v%d, s[%d:%d], s%d offen lds' % (t0, S_P, S_P + 3, S_T1))
            A.i('s_add_u32 m0, m0, 1024')
            A.i('s_add_u32 s%d, s%d, 1024' % (S_T1, S_T1))
    n = NI
    if os.environ.get('THR', '1') == '1':
        issue_w()
        if not kv:
            k1_repack_setup(A)
        A.i('s_waitcnt vmcnt(%d)' % n)
        A.i('s_barrier')
        issue_w(); issue_w()
    else:
        for i in range(3):
            issue_w()
        A.i('s_waitcnt vmcnt(%d)' % (3 * n))
        A.i('s_barrier')
    A.raw('L_k1_ldw_loop_%s:' % role)
    A.i('s_waitcnt vmcnt(%d)' % (2 * n))
    A.i('s_barrier')
    issue_w()
    A.i('s_add_u32 s%d, s%d, 1' % (S_CNT, S_CNT))
    A.i('s_cmp_lt_u32 s%d, 16' % S_CNT)
    A.i('s_cbranch_scc1 L_k1_ldw_loop_%s' % role)
    A.i('s_waitcnt vmcnt(%d)' % (2 * n))
    A.i('s_barrier')
    if not kv:
        A.i('s_branch L_k1_rp')
    else:
        A.i('s_waitcnt vmcnt(%d)' % n)
        A.i('s_barrier')
        A.i('s_waitcnt vmcnt(0)')
        A.i('s_barrier')
        A.i('s_barrier')
        A.i('s_endpgm')


RP_VD, RP_VO, RP_VO4, RP_VTR, RP_VST, RP_GXO, RP_GSO, RP_GWO, RP_FR, RP_GX, RP_GWR, RP_GA = 32, 37, 42, 47, 48, 49, 50, 51, 52, 72, 92, 112
RP_VT4 = 31
S_RPW, S_RPD, S_RPS, S_RPT, S_RPG, S_RPL, S_RPF = 76, 77, 78, 79, 80, 81, 82
S_WD, S_WOO, S_WFO = 84, 88, 92


def k1_repack_setup(A):
    t0, t1, t2, t3, t4, t5 = 14, 15, 1, 2, 3, 4
    VD, VO, VO4 = RP_VD, RP_VO, RP_VO4
    srd(A, S_WD, 30, 31, 1728 * 1280)
    srd(A, S_WOO, 22, 23, 640 * 1280)
    srd(A, S_WFO, 38, 39, WF_BYTES, WS_WF)
    srd(A, S_GW, 32, 33, 1280)
    srd(A, S_G, 38, 39, 8192, WS_G)
    srd(A, S_FL, 38, 39, FL_BYTES, WS_FL)
    for inst in range(5):
        A.i('v_add_u32 v%d, %d, v0' % (t1, 64 * inst))
        A.i('v_mul_u32_u24 v%d, 205, v%d' % (t0, t1))
        A.i('v_lshrrev_b32 v%d, 11, v%d' % (t0, t0))
        A.i('v_mul_u32_u24 v%d, 10, v%d' % (t2, t0))
        A.i('v_sub_u32 v%d, v%d, v%d' % (t1, t1, t2))
        A.i('v_lshlrev_b32 v%d, 4, v%d' % (t1, t1))
        A.i('v_and_b32 v%d, 7, v%d' % (t2, t0))
        A.i('v_and_b32 v%d, 8, v%d' % (t3, t0))
        A.i('v_lshl_or_b32 v%d, v%d, 1, v%d' % (t2, t3, t2))
        A.i('v_and_b32 v%d, 16, v%d' % (t3, t0))
        A.i('v_lshrrev_b32 v%d, 1, v%d' % (t3, t3))
        A.i('v_or_b32 v%d, v%d, v%d' % (t2, t2, t3))
        A.i('v_mul_u32_u24 v%d, 1280, v%d' % (t2, t2))
        A.i('v_add_u32 v%d, v%d, v%d' % (VD + inst, t2, t1))
        A.i('v_bfe_u32 v%d, v%d, 3, 1' % (t3, t0))
        A.i('v_and_b32 v%d, 3, v%d' % (t4, t0))
        A.i('v_lshl_add_u32 v%d, v%d, 2, v%d' % (t3, t3, t4))
        A.i('v_mul_u32_u24 v%d, 20, v%d' % (t3, t3))
        A.i('v_lshrrev_b32 v%d, 4, v%d' % (t4, t0))
        A.i('v_bfe_u32 v%d, v%d, 2, 1' % (t5, t0))
        A.i('v_lshl_add_u32 v%d, v%d, 1, v%d' % (t4, t4, t5))
        A.i('v_bfe_u32 v%d, v%d, 3, 1' % (t5, t0))
        A.i('v_mul_u32_u24 v%d, 20, v%d' % (t5, t5))
        A.i('v_lshl_add_u32 v%d, v%d, 2, v%d' % (t5, t4, t5))
        A.i('v_and_b32 v%d, 3, v%d' % (t2, t0))
        A.i('v_add_u32 v%d, v%d, v%d' % (t5, t5, t2))
        A.i('v_add3_u32 v%d, v%d, v%d, 16' % (t4, t4, t3))
        A.i('v_mul_u32_u24 v%d, 1280, v%d' % (t5, t5))
        A.i('v_mul_u32_u24 v%d, 1280, v%d' % (t4, t4))
        A.i('v_add_u32 v%d, v%d, v%d' % (VO + inst, t5, t1))
        A.i('v_add_u32 v%d, v%d, v%d' % (VO4 + inst, t4, t1))
    A.i('s_and_b32 s%d, s%d, 3' % (S_RPL, S_W))
    A.i('s_mul_i32 s%d, s%d, 5120' % (S_RPL, S_RPL))
    A.i('s_add_u32 s%d, s%d, %d' % (S_RPL, S_RPL, XBUF))
    A.i('v_lshrrev_b32 v%d, 1, v%d' % (t0, V_G))
    A.i('v_lshlrev_b32 v%d, 4, v%d' % (t0, t0))
    A.i('v_and_b32 v%d, 1, v%d' % (t1, V_G))
    A.i('v_lshl_add_u32 v%d, v%d, 2, v%d' % (t0, t1, t0))
    A.i('v_add_u32 v%d, v%d, v%d' % (t0, t0, V_R))
    A.i('v_mul_u32_u24 v%d, 160, v%d' % (t0, t0))
    A.i('v_add_u32 v%d, s%d, v%d' % (t0, S_RPL, t0))
    A.i('v_lshl_add_u32 v%d, v%d, 4, v%d' % (RP_VTR, V_C, t0))
    A.i('v_lshl_add_u32 v%d, v%d, 3, v%d' % (RP_VT4, V_C, t0))
    A.i('v_lshlrev_b32 v%d, 4, v0' % RP_VST)
    A.i('v_lshlrev_b32 v%d, 4, v%d' % (RP_GWO, V_L))
    A.i('v_mul_u32_u24 v%d, 1280, v%d' % (RP_GXO, V_G))
    A.i('v_add_u32 v%d, v%d, v%d' % (RP_GXO, RP_GXO, RP_GWO))
    A.i('v_lshlrev_b32 v%d, 2, v%d' % (t2, V_G))
    A.i('v_mov_b32 v%d, 0x%x' % (t3, BIG))
    A.i('v_cmp_eq_u32 vcc, 0, v%d' % V_L)
    A.i('v_cndmask_b32 v%d, v%d, v%d, vcc' % (RP_GSO, t3, t2))
    for k in range(4):
        A.i('v_mov_b32 v%d, 0' % (RP_GA + k))
    A.i('s_lshl_b32 s%d, s%d, 2' % (S_RPW, S_IDX))
    A.i('s_add_u32 s%d, s%d, s%d' % (S_RPW, S_RPW, S_W))
    A.i('s_sub_u32 s%d, s%d, %d' % (S_RPW, S_RPW, 64 * 4 + 8))
    A.i('s_lshl_b32 s%d, s%d, 10' % (S_RPF, S_RPW))
    A.i('s_cmp_lt_u32 s%d, 512' % S_RPW)
    A.i('s_cselect_b32 s%d, s%d, 0x20000' % (S_RPG, S_RPW))
    A.i('s_and_b32 s%d, s%d, 7' % (S_T0, S_RPW))
    A.i('s_lshr_b32 s%d, s%d, 3' % (S_T1, S_RPW))
    A.i('s_mul_i32 s%d, s%d, 74' % (S_RPD, S_T0))
    A.i('s_add_u32 s%d, s%d, s%d' % (S_RPD, S_RPD, S_T1))
    A.i('s_mul_i32 s%d, s%d, 5120' % (S_RPD, S_RPD))
    A.i('s_mul_i32 s%d, s%d, 160' % (S_T0, S_T0))
    A.i('s_mul_i32 s%d, s%d, 40960' % (S_RPS, S_T1))
    A.i('s_add_u32 s%d, s%d, s%d' % (S_RPS, S_RPS, S_T0))
    A.i('s_mov_b32 s%d, 0' % S_RPT)
    A.i('s_cmp_lt_u32 s%d, 54' % S_T1)
    A.i('s_cbranch_scc1 L_rps_done_%d' % A.count)
    lab = 'L_rps_done_%d' % (A.count - 1)
    A.i('s_sub_u32 s%d, s%d, 54' % (S_T1, S_T1))
    A.i('s_mul_i32 s%d, s%d, 52' % (S_T2, S_T1))
    A.i('s_lshr_b32 s%d, s%d, 8' % (S_T2, S_T2))
    A.i('s_mul_i32 s%d, s%d, 5' % (S_RPS, S_T2))
    A.i('s_sub_u32 s%d, s%d, s%d' % (S_T1, S_T1, S_RPS))
    A.i('s_mul_i32 s%d, s%d, %d' % (S_RPS, S_T2, 160 * 1280))
    A.i('s_add_u32 s%d, s%d, s%d' % (S_RPS, S_RPS, S_T0))
    A.i('s_mul_i32 s%d, s%d, %d' % (S_T2, S_T1, 40 * 1280))
    A.i('s_cmp_eq_u32 s%d, 4' % S_T1)
    A.i('s_cselect_b32 s%d, 0, s%d' % (S_T2, S_T2))
    A.i('s_cselect_b32 s%d, 2, 1' % S_RPT)
    A.i('s_add_u32 s%d, s%d, s%d' % (S_RPS, S_RPS, S_T2))
    A.raw(lab + ':')
    A.i('s_cmp_lt_u32 s%d, 592' % S_RPW)
    A.i('s_cselect_b32 s%d, s%d, 0x%x' % (S_RPS, S_RPS, BIG))
    A.i('s_cselect_b32 s%d, s%d, 0x%x' % (S_RPD, S_RPD, BIG))


def k1_repack(A):
    A.label('L_k1_rp')
    A.hist = []; A.vmq = []; A.lgq = []
    FR, GX, GWR, GA = RP_FR, RP_GX, RP_GWR, RP_GA
    for i in range(5):
        A.i('buffer_load_dwordx4 %s, v%d, s[%d:%d], 0 offen offset:%d' % (vr(GWR + 4 * i, 4), RP_GWO, S_GW, S_GW + 3, 256 * i))
    A.i('s_mul_i32 s%d, s%d, 5120' % (S_T0, S_RPG))
    for i in range(5):
        A.i('buffer_load_dwordx4 %s, v%d, s[%d:%d], s%d offen offset:%d' % (vr(GX + 4 * i, 4), RP_GXO, S_X, S_X + 3, S_T0, 256 * i))
    A.i('buffer_store_dwordx4 %s, v%d, s[%d:%d], s%d offen' % (vr(GA, 4), RP_VST, S_FL, S_FL + 3, S_RPF))
    A.i('s_mov_b32 m0, s%d' % S_RPL)
    A.i('s_cmp_eq_u32 s%d, 1' % S_RPT)
    A.i('s_cbranch_scc1 L_k1_rp_wo')
    A.i('s_cmp_eq_u32 s%d, 2' % S_RPT)
    A.i('s_cbranch_scc1 L_k1_rp_wo4')

    def dmas(v, sreg):
        for inst in range(5):
            A.i('buffer_load_dwordx4 v%d, s[%d:%d], s%d offen lds' % (v + inst, sreg, sreg + 3, S_RPS))
            if inst < 4:
                A.i('s_add_u32 m0, m0, 1024')
    dmas(RP_VD, S_WD)
    A.i('s_branch L_k1_rp_go')
    A.raw('L_k1_rp_wo:')
    A.hist = []
    dmas(RP_VO, S_WOO)
    A.i('s_branch L_k1_rp_go')
    A.raw('L_k1_rp_wo4:')
    A.hist = []
    dmas(RP_VO4, S_WOO)
    A.raw('L_k1_rp_go:')
    A.hist = []
    A.i('s_waitcnt vmcnt(16)')
    A.i('s_barrier')
    A.i('s_barrier')
    A.i('s_barrier')
    A.i('s_setprio 0')
    A.i('s_waitcnt vmcnt(0)')
    for t in range(5):
        for jh in range(2):
            if t < 4:
                A.i('ds_read_b64_tr_b16 %s, v%d offset:%d' % (vr(FR + 4 * t + 2 * jh, 2), RP_VTR, 8 * jh * 160 + 64 * (t >> 1) + 8 * (t & 1)))
            else:
                A.i('ds_read_b64_tr_b16 %s, v%d offset:%d' % (vr(FR + 4 * t + 2 * jh, 2), RP_VT4, 8 * jh * 160 + 128))
    A.i('s_mov_b32 s%d, 0x%08x' % (S_CL2E, f32bits(LOG2E)))
    for i in range(20):
        A.i('v_dot2_f32_bf16 v%d, v%d, v%d, v%d' % (GA + (i & 1), GX + i, GWR + i, GA + (i & 1)))
    A.i('s_waitcnt lgkmcnt(0)')
    for t in range(4):
        A.i('buffer_store_dwordx4 %s, v%d, s[%d:%d], s%d offen offset:%d' % (vr(FR + 4 * t, 4), RP_VST, S_WFO, S_WFO + 3, S_RPD, 1024 * t) + SC)
    A.i('s_add_u32 s%d, s%d, 4096' % (S_RPD, S_RPD))
    A.i('buffer_store_dwordx4 %s, v%d, s[%d:%d], s%d offen' % (vr(FR + 16, 4), RP_VST, S_WFO, S_WFO + 3, S_RPD) + SC)
    A.i('v_add_f32 v%d, v%d, v%d' % (GA, GA, GA + 1))
    for m in ('quad_perm:[1,0,3,2]', 'quad_perm:[2,3,0,1]', 'row_half_mirror', 'row_mirror'):
        A.i('v_add_f32_dpp v%d, v%d, v%d %s row_mask:0xf bank_mask:0xf' % (GA, GA, GA, m))
    A.i('v_mul_f32 v%d, s%d, v%d' % (GA, S_CL2E, GA))
    A.i('v_exp_f32 v%d, -v%d' % (GA, GA))
    A.i('v_add_f32 v%d, 1.0, v%d' % (GA, GA))
    A.i('v_rcp_f32 v%d, v%d' % (GA, GA))
    A.i('s_lshl_b32 s%d, s%d, 4' % (S_T0, S_RPG))
    A.i('buffer_store_dword v%d, v%d, s[%d:%d], s%d offen' % (GA, RP_GSO, S_G, S_G + 3, S_T0))
    A.i('s_endpgm')


def wp_read(A, idx, WPR):
    kap, tp = idx // 5, idx % 5
    rb_ = WPR + tp * 4
    for jh in range(2):
        off = (8 * kap + 4 * jh) * 40 + 8 * tp
        if kap == 2 and jh == 1:
            continue
        A.i('ds_read_b64_tr_b16 %s, v%d offset:%d' % (vr(rb_ + 2 * jh, 2), V_T, off), tag=('wp', idx))


def phi_compact(A, ACC, n):
    for st in range(n):
        T, B = ACC + 20 * st, ACC + 12 * st
        for k in range(10):
            A.i('v_cvt_pk_bf16_f32 v%d, v%d, v%d' % (B + k, T + 2 * k, T + 2 * k + 1))
    for st in range(n):
        B = ACC + 12 * st
        A.i('v_mov_b32 v%d, 0' % (B + 10))
        A.i('v_mov_b32 v%d, 0' % (B + 11))


def phi_mfma_ops(A, BF, WPR, P, more):
    ops = []
    for idx in range(15):
        def f(idx=idx):
            kap, tp = idx // 5, idx % 5
            A.wait_lg(('wp', idx))
            c = '0' if kap == 0 else vr(P + 4 * tp, 4)
            A.i('v_mfma_f32_16x16x32_bf16 %s, %s, %s, %s' % (vr(P + 4 * tp, 4), vr(WPR + tp * 4, 4), vr(BF + 4 * kap, 4), c))
            if idx + 5 < 15:
                wp_read(A, idx + 5, WPR)
            elif more:
                wp_read(A, idx - 10, WPR)
        ops.append(f)
    return ops


def phi_softmax_ops(P, E, OUT):
    L = []
    mx, mn, s0, s2 = E + 20, E + 22, E + 24, E + 21
    t1 = E + 23
    L.append('v_max3_f32 v%d, v%d, v%d, v%d' % (mx, P, P + 1, P + 2))
    L.append('v_min3_f32 v%d, v%d, v%d, v%d' % (mn, P, P + 1, P + 2))
    L.append('v_max3_f32 v%d, v%d, v%d, v%d' % (s2, P + 3, P + 4, P + 5))
    L.append('v_min3_f32 v%d, v%d, v%d, v%d' % (t1, P + 3, P + 4, P + 5))
    for k in range(6, 20, 4):
        L.append('v_max3_f32 v%d, v%d, v%d, v%d' % (mx, mx, P + k, P + k + 1))
        L.append('v_min3_f32 v%d, v%d, v%d, v%d' % (mn, mn, P + k, P + k + 1))
        if k + 3 < 20:
            L.append('v_max3_f32 v%d, v%d, v%d, v%d' % (s2, s2, P + k + 2, P + k + 3))
            L.append('v_min3_f32 v%d, v%d, v%d, v%d' % (t1, t1, P + k + 2, P + k + 3))
    L.append('v_max_f32 v%d, v%d, v%d' % (mx, mx, s2))
    L.append('v_min_f32 v%d, v%d, v%d' % (mn, mn, t1))
    L.append('v_mul_f32 v%d, s%d, v%d' % (mx, S_CL2E, mx))
    L.append('v_mul_f32 v%d, s%d, v%d' % (mn, S_CL2E, mn))
    sc = 's[%d:%d]' % (S_CL2E, S_CL2E + 1)
    for sign in range(2):
        for k in range(0, 20, 2):
            if sign == 0:
                L.append('v_pk_fma_f32 %s, %s, %s, %s op_sel_hi:[1,0,0] neg_lo:[0,0,1] neg_hi:[0,0,1]' % (
                    vr(E + k, 2), vr(P + k, 2), sc, vr(mx, 2)))
            else:
                L.append('v_pk_fma_f32 %s, %s, %s, %s op_sel_hi:[1,0,0] neg_lo:[1,0,0] neg_hi:[1,0,0]' % (
                    vr(E + k, 2), vr(P + k, 2), sc, vr(mn, 2)))
        for k in range(20):
            L.append('v_exp_f32 v%d, v%d' % (E + k, E + k))
            if k == 4:
                L.append('v_pk_add_f32 %s, %s, %s' % (vr(s0, 2), vr(E, 2), vr(E + 2, 2)))
            elif k > 4 and k % 2 == 0:
                L.append('v_pk_add_f32 %s, %s, %s' % (vr(s0, 2), vr(s0, 2), vr(E + k - 2, 2)))
        L.append('v_pk_add_f32 %s, %s, %s' % (vr(s0, 2), vr(s0, 2), vr(E + 18, 2)))
        L.append('v_add_f32 v%d, v%d, v%d' % (s0, s0, s0 + 1))
        L.append('v_rcp_f32 v%d, v%d' % (s0, s0))
        for k in range(0, 20, 2):
            L.append('v_pk_mul_f32 %s, %s, %s op_sel_hi:[1,0]' % (vr(E + k, 2), vr(E + k, 2), vr(s0, 2)))
        for k in range(10):
            L.append('v_cvt_pk_bf16_f32 v%d, v%d, v%d' % (OUT[sign * 10 + k], E + 2 * k, E + 2 * k + 1))
    return L


def phi_pipeline(A, ACC, n, WPR, E, emit_out):
    PB = [116, ACC + 48]
    XO = ACC + 68
    for f in phi_mfma_ops(A, ACC, WPR, PB[0], n > 1):
        f()
    for st in range(n):
        if st < 2:
            A.stamp(10 + st)
        B = ACC + 12 * st
        chunks = [B, B + 4, B + 8, XO, XO + 4]
        OUT = [c + k for c in chunks for k in range(4)]
        sm = phi_softmax_ops(PB[st % 2], E, OUT)
        mf = phi_mfma_ops(A, ACC + 12 * (st + 1), WPR, PB[(st + 1) % 2], st + 2 < n) if st + 1 < n else []
        gap = max(1, (len(sm) - 30) // 15)
        for k, ins in enumerate(sm):
            A.i(ins)
            if mf and k >= 4 and (k - 4) % gap == 0:
                mf.pop(0)()
        for f in mf:
            f()
        emit_out(st, chunks)


def k1_role(A, role):
    PP = role_params(role)
    gu, kv = PP['gu'], PP['kv']
    RS, cstride, tstride, SUBSZ, BUFSZ = (PP[k] for k in ('RS', 'cstride', 'tstride', 'SUBSZ', 'BUFSZ'))
    if gu:
        RS = 192
    NWB = 3 if gu else 1
    NS = 3 if role == 'q' else 4
    NT = 6 if gu else 5
    LA = 4
    RING = NT
    nb = NT - LA - 1
    if gu:
        V_XF, V_RING = 112, 144
    else:
        V_XF, V_RING = 96, 128
    XSET = NS * 4
    A.label('L_k1_' + role)
    A.hist = []; A.vmq = []; A.lgq = []
    A.i('s_cmp_ge_u32 s%d, 8' % S_W)
    A.i('s_cbranch_scc1 L_k1_ld_' + role)
    A.stamp(0)
    A.stamp_rt(8)
    t0, t1, t2, t3 = V_T, V_T + 1, V_XF, V_XF + 1
    PF = os.environ.get('PF', '')
    if 'x' in PF:
        A.i('s_lshr_b32 s%d, s2, 3' % S_T0)
        A.i('s_mul_i32 s%d, s%d, %d' % (S_T0, S_T0, 704 * 128))
        A.i('s_mul_i32 s%d, s%d, %d' % (S_T1, S_W, 88 * 128))
        A.i('s_add_u32 s%d, s%d, s%d' % (S_T0, S_T0, S_T1))
        A.i('v_lshlrev_b32 v%d, 7, v0' % t0)
        A.i('s_mov_b32 m0, %d' % K1_LDS)
        A.i('buffer_load_dword v%d, s[%d:%d], s%d offen lds' % (t0, S_X, S_X + 3, S_T0), tag='pf')
        A.i('s_add_u32 s%d, s%d, 8192' % (S_T0, S_T0))
        A.i('s_mov_b64 exec, 0xffffff')
        A.i('buffer_load_dword v%d, s[%d:%d], s%d offen lds' % (t0, S_X, S_X + 3, S_T0), tag='pf')
        A.i('s_mov_b64 exec, -1')
    A.i('v_lshrrev_b32 v%d, 1, v%d' % (t0, V_G))
    A.i('v_lshlrev_b32 v%d, 4, v%d' % (t0, t0))
    A.i('v_and_b32 v%d, 1, v%d' % (t2, V_G))
    A.i('v_lshl_add_u32 v%d, v%d, 2, v%d' % (t0, t2, t0))
    A.i('v_add_u32 v%d, v%d, v%d' % (t0, t0, V_R))
    A.i('v_mul_u32_u24 v%d, %d, v%d' % (t0, RS, t0))
    A.i('v_mul_u32_u24 v%d, %d, v%d' % (t1, cstride, V_C))
    if gu:
        A.i('v_add3_u32 v%d, v%d, v%d, %s' % (t0, t0, t1, '0'))
        A.i('v_add_u32 v%d, %d, v%d' % (t0, WRING, t0))
        for k in range(3):
            A.i('s_cmp_eq_u32 s%d, 0' % S_WN)
            A.i('s_cselect_b32 s%d, %d, %d' % (S_T0, k, [4, 5, 3][k]))
            A.i('v_xor_b32 v%d, s%d, v%d' % (t1, S_T0, t2))
            A.i('v_lshl_add_u32 v%d, v%d, 5, v%d' % (V_WA + k, t1, t0))
    else:
        A.i('s_mul_i32 s%d, s%d, %d' % (S_T0, S_WN, SUBSZ))
        A.i('s_add_u32 s%d, s%d, %d' % (S_T0, S_T0, WRING))
        A.i('v_add3_u32 v%d, v%d, v%d, s%d' % (V_WA, t0, t1, S_T0))
    A.i('v_lshrrev_b32 v%d, 1, v%d' % (t0, V_L))
    A.i('v_xor_b32 v%d, v%d, v%d' % (t1, t0, V_G))
    A.i('v_lshlrev_b32 v%d, 7, v%d' % (t0, V_L))
    A.i('v_lshl_add_u32 v%d, v%d, 4, v%d' % (t0, t1, t0))
    A.i('s_mul_i32 s%d, s%d, %d' % (S_T0, S_WM, NS * 2048))
    A.i('v_add_u32 v%d, s%d, v%d' % (V_XA, S_T0, t0))
    A.i('v_xor_b32 v%d, 64, v%d' % (V_XA + 1, V_XA))
    A.i('v_mov_b32 v%d, v%d' % (V_XB, V_XA))
    for k in range(NWB):
        A.i('v_mov_b32 v%d, v%d' % (V_WB + k, V_WA + k))
    A.i('s_mov_b32 s%d, %d' % (S_NXT, BUFSZ))
    A.i('s_mov_b32 s%d, 0' % S_XN)
    A.i('s_mov_b32 s%d, 0' % S_CNT)
    for k in range(NT * NS * 4):
        A.i('v_mov_b32 v%d, 0' % (V_ACC + k))
    if gu:
        srd(A, S_O, 38, 39, H_BYTES, WS_H)
    elif kv:
        srd(A, S_O, 38, 39, KVP_BYTES, WS_KVP)
    else:
        srd(A, S_O, 38, 39, PQ_BYTES, WS_PQ)
    A.stamp(1)

    def tile_off(n):
        if gu:
            return (n // 3) * 6144
        return n * tstride

    def rd_w(p, n, jh):
        rg = V_RING + (n % RING) * 4
        wb = V_WB + p * NWB + (n % 3 if gu else 0)
        A.i('ds_read_b64_tr_b16 %s, v%d offset:%d' % (vr(rg + 2 * jh, 2), wb, tile_off(n) + 8 * jh * RS),
            tag=('W', p, n))

    def rd_x(p, st):
        A.i('ds_read_b128 %s, v%d offset:%d' % (vr(V_XF + p * XSET + st * 4, 4), V_XB + p, st * 2048), tag=('X', p))

    def rd_gw(p):
        A.i('v_add_u32 v%d, s%d, v%d' % (V_WA + 1, S_KX, V_GWA))
        A.i('ds_read_b128 %s, v%d' % (vr(V_GWF + p * 4, 4), V_WA + 1), tag=('X', p))
        A.i('s_add_u32 s%d, s%d, 64' % (S_KX, S_KX))
        A.i('s_cmp_eq_u32 s%d, 1280' % S_KX)
        A.i('s_cselect_b32 s%d, 0, s%d' % (S_KX, S_KX))

    def acc(n, st):
        return V_ACC + (st * NT + n) * 4

    def stage(p):
        for n in range(NT):
            fill = []
            if n == nb:
                def bar():
                    if p == 1:
                        A.i('s_add_u32 s%d, s%d, %d' % (S_XN, S_XN, XBUF))
                        A.i('s_cmp_eq_u32 s%d, %d' % (S_XN, 3 * XBUF))
                        A.i('s_cselect_b32 s%d, 0, s%d' % (S_XN, S_XN))
                    A.i('s_barrier')
                    A.i('v_add_u32 v%d, s%d, v%d' % (V_XB + (p ^ 1), S_XN, V_XA + (p ^ 1)))
                    for k in range(NWB):
                        A.i('v_add_u32 v%d, s%d, v%d' % (V_WB + (p ^ 1) * NWB + k, S_NXT, V_WA + k))
                fill.append(bar)
                def adv():
                    A.i('s_add_u32 s%d, s%d, %d' % (S_NXT, S_NXT, BUFSZ))
                    A.i('s_cmp_eq_u32 s%d, %d' % (S_NXT, NBUF * BUFSZ))
                    A.i('s_cselect_b32 s%d, 0, s%d' % (S_NXT, S_NXT))
                fill.append(adv)
            xs = n - (nb + 1)
            if 0 <= xs < 2:
                for st in range(xs * 2, min(NS, xs * 2 + 2)):
                    fill.append(lambda st=st: rd_x(p ^ 1, st))
            for jh in range(2):
                if n + LA < NT:
                    fill.insert(jh, (lambda jh=jh, n=n: rd_w(p, n + LA, jh)))
                else:
                    fill.append(lambda jh=jh, n=n: rd_w(p ^ 1, n + LA - NT, jh))
            if n == 0:
                A.wait_lg(('X', p))
            A.wait_lg(('W', p, n))
            rg = V_RING + (n % RING) * 4
            mf = []
            for st in range(NS):
                mf.append('v_mfma_f32_16x16x32_bf16 %s, %s, %s, %s' % (vr(acc(n, st), 4), vr(rg, 4),
                                                                     vr(V_XF + p * XSET + st * 4, 4), vr(acc(n, st), 4)))
            for k, m in enumerate(mf):
                if not os.environ.get('NOMFMA'):
                    A.i(m)
                rem = len(mf) - k
                take = -(-len(fill) // rem)
                for _ in range(take):
                    fill.pop(0)()

    A.i('s_barrier')
    for st in range(NS):
        rd_x(0, st)
    for n in range(LA):
        rd_w(0, n, 0); rd_w(0, n, 1)
    A.wait_all(vm=False)
    A.stamp(2)
    saved = (A.lines, A.hist, A.vmq, A.count, A.nops)
    A.lines = []; A.hist = []
    stage(0); stage(1)
    steady = list(A.lgq)
    A.lines, A.hist, A.vmq, A.count, A.nops = saved
    A.lgq = list(steady)
    A.fence()
    A.raw('L_k1_loop_%s:' % role)
    stage(0)
    stage(1)
    assert A.lgq == steady, (A.lgq, steady)
    A.i('s_add_u32 s%d, s%d, 1' % (S_CNT, S_CNT))
    A.i('s_cmp_lt_u32 s%d, 10' % S_CNT)
    A.i('s_cbranch_scc1 L_k1_loop_%s' % role)
    A.fence()
    A.wait_all()
    A.stamp(12)

    A.i('s_mul_i32 s%d, s%d, %d' % (S_T0, S_RB, 4 * NS))
    A.i('s_mul_i32 s%d, s%d, %d' % (S_T1, S_WM, NS))
    A.i('s_add_u32 s%d, s%d, s%d' % (S_T0, S_T0, S_T1))
    if gu:
        C0 = -2.0 * math.sqrt(2.0 / math.pi) * LOG2E
        C1 = C0 * 0.044715
        vC0, vO = t0, t1
        A.i('v_mov_b32 v%d, 0x%08x' % (vC0, f32bits(C0)))
        A.i('s_mov_b32 s%d, 0x%08x' % (S_CL2E, f32bits(C1)))
        A.i('s_mul_i32 s%d, s%d, 54' % (S_T0, S_T0))
        A.i('s_mul_i32 s%d, s%d, 3' % (S_T1, S_SUB))
        A.i('s_add_u32 s%d, s%d, s%d' % (S_T0, S_T0, S_T1))
        A.i('s_lshl_b32 s%d, s%d, 10' % (S_T0, S_T0))
        A.i('s_lshl_b32 s%d, s%d, 11' % (S_T1, S_WN))
        A.i('s_add_u32 s%d, s%d, s%d' % (S_T1, S_T1, S_T0))
        A.i('s_lshl_b32 s%d, s%d, 3' % (S_T2, S_WN))
        A.i('s_add_u32 s%d, s%d, s%d' % (S_T2, S_T2, S_T0))
        A.i('s_add_u32 s%d, s%d, 1024' % (S_T2, S_T2))
        A.i('v_lshlrev_b32 v%d, 4, v0' % vO)
        for st in range(4):
            e = 112 + (st % 2) * 28
            xg, xu = acc(0, st), acc(3, st)
            sc = 's[%d:%d]' % (S_CL2E, S_CL2E + 1)
            for j in range(0, 12, 2):
                A.i('v_pk_mul_f32 %s, %s, %s' % (vr(e + j, 2), vr(xg + j, 2), vr(xg + j, 2)))
            for j in range(0, 12, 2):
                A.i('v_pk_fma_f32 %s, %s, %s, %s op_sel_hi:[1,0,0]' % (vr(e + j, 2), vr(e + j, 2), sc, vr(vC0, 2)))
            for j in range(0, 12, 2):
                A.i('v_pk_mul_f32 %s, %s, %s' % (vr(e + j, 2), vr(e + j, 2), vr(xg + j, 2)))
            for j in range(12):
                A.i('v_exp_f32 v%d, v%d' % (e + j, e + j))
                if j % 2 == 1:
                    A.i('v_pk_mul_f32 %s, %s, %s' % (vr(xg + j - 1, 2), vr(xg + j - 1, 2), vr(xu + j - 1, 2)))
            for j in range(0, 12, 2):
                A.i('v_pk_add_f32 %s, %s, 1.0 op_sel_hi:[1,0]' % (vr(e + j, 2), vr(e + j, 2)))
            for j in range(12):
                A.i('v_rcp_f32 v%d, v%d' % (e + j, e + j))
            for j in range(0, 12, 2):
                A.i('v_pk_mul_f32 %s, %s, %s' % (vr(e + j, 2), vr(e + j, 2), vr(xg + j, 2)))
            for j in range(6):
                A.i('v_cvt_pk_bf16_f32 v%d, v%d, v%d' % (e + 12 + j, e + 2 * j, e + 2 * j + 1))
            A.i('buffer_store_dwordx4 %s, v%d, s[%d:%d], s%d offen' % (vr(e + 12, 4), vO, S_O, S_O + 3, S_T1) + SC, tag='st')
            A.i('buffer_store_dwordx2 %s, v%d, s[%d:%d], s%d offen' % (vr(e + 16, 2), vO, S_O, S_O + 3, S_T2) + SC, tag='st')
            if st < 3:
                A.i('s_add_u32 s%d, s%d, %d' % (S_T1, S_T1, 54 * 1024))
                A.i('s_add_u32 s%d, s%d, %d' % (S_T2, S_T2, 54 * 1024))
        A.stamp(13)
        A.stamp_end(38, 39, WS_STAMP, S_W, 8)
        A.i('s_endpgm')
        return

    WPR, P, E, MISC = 96, 116, 136, 162
    t2, t3 = 1, 2
    A.i('s_mov_b32 s%d, 0x%08x' % (S_CL2E, f32bits(LOG2E)))
    A.i('v_mul_u32_u24 v%d, 800, v%d' % (t0, V_G))
    A.i('v_mul_u32_u24 v%d, 40, v%d' % (t1, V_R))
    if kv:
        A.i('s_mov_b32 s%d, %d' % (S_T1, WPHI))
    else:
        A.i('s_mul_i32 s%d, s%d, 3200' % (S_T1, S_WN))
        A.i('s_add_u32 s%d, s%d, %d' % (S_T1, S_T1, WPHI))
    A.i('v_add3_u32 v%d, v%d, v%d, s%d' % (t0, t0, t1, S_T1))
    A.i('v_mov_b32 v%d, %d' % (t1, WPHI + 6400))
    A.i('v_cmp_eq_u32 vcc, v%d, v%d' % (V_C, V_G))
    A.i('v_cndmask_b32 v%d, v%d, v%d, vcc' % (V_T, t1, t0))
    for idx in range(5):
        wp_read(A, idx, WPR)
    if role == 'q':
        vO = MISC
        A.i('v_mul_u32_u24 v%d, 1280, v%d' % (vO, V_G))
        A.i('v_lshl_add_u32 v%d, v%d, 4, v%d' % (vO, V_L, vO))
        A.i('s_lshl_b32 s%d, s%d, 5' % (S_T0, S_T0))
        A.i('s_lshl_b32 s%d, s%d, 3' % (S_T1, S_SUB))
        A.i('s_add_u32 s%d, s%d, s%d' % (S_T0, S_T0, S_T1))
        A.i('s_lshl_b32 s%d, s%d, 2' % (S_T1, S_WN))
        A.i('s_add_u32 s%d, s%d, s%d' % (S_T0, S_T0, S_T1))
        A.i('s_mul_i32 s%d, s%d, 1280' % (S_T0, S_T0))
        def out_q(st, chunks):
            for k in range(5):
                A.i('buffer_store_dwordx4 %s, v%d, s[%d:%d], s%d offen offset:%d' % (
                    vr(chunks[k], 4), vO, S_O, S_O + 3, S_T0, 256 * k) + SC, tag='st')
            if st < NS - 1:
                A.i('s_add_u32 s%d, s%d, %d' % (S_T0, S_T0, 32 * 1280))
        phi_compact(A, V_ACC, NS)
        phi_pipeline(A, V_ACC, NS, WPR, E, out_q)
        A.stamp(13)
        A.stamp_end(38, 39, WS_STAMP, S_W, 8)
        A.i('s_endpgm')
        return

    vA0, vA1, vB = 3, 4, 5
    tq = E
    A.i('v_lshrrev_b32 v%d, 1, v%d' % (tq, V_G))
    A.i('v_lshlrev_b32 v%d, 3, v%d' % (tq, tq))
    A.i('v_and_b32 v%d, 1, v%d' % (vA1, V_G))
    A.i('v_lshl_add_u32 v%d, v%d, 2, v%d' % (tq, vA1, tq))
    A.i('v_add_u32 v%d, v%d, v%d' % (tq, tq, V_R))
    A.i('v_lshlrev_b32 v%d, 1, v%d' % (tq, tq))
    A.i('s_and_b32 s%d, s%d, 3' % (S_NXT, S_W))
    A.i('s_lshr_b32 s%d, s%d, 2' % (S_XN, S_W))
    A.i('s_xor_b32 s%d, s%d, 1' % (S_XN, S_XN))
    A.i('s_mul_i32 s%d, s%d, 80' % (S_T2, S_NXT))
    A.i('v_mul_u32_u24 v%d, %d, v%d' % (vA0, PK_RS, tq))
    A.i('v_lshl_add_u32 v%d, v%d, 3, v%d' % (vA0, V_C, vA0))
    A.i('v_add_u32 v%d, s%d, v%d' % (vA0, S_T2, vA0))
    A.i('v_add_u32 v%d, %d, v%d' % (vA1, 128 * PK_RS, vA0))
    A.i('s_mul_i32 s%d, s%d, 40' % (S_T2, S_NXT))
    A.i('s_lshl_b32 s%d, s%d, 5' % (S_KX, S_XN))
    A.i('s_add_u32 s%d, s%d, s%d' % (S_T2, S_T2, S_KX))
    A.i('s_add_u32 s%d, s%d, %d' % (S_T2, S_T2, PV_OFF))
    A.i('v_mul_u32_u24 v%d, %d, v%d' % (vB, PV_RS, tq))
    A.i('v_lshl_add_u32 v%d, v%d, 3, v%d' % (vB, V_C, vB))
    A.i('v_add_u32 v%d, s%d, v%d' % (vB, S_T2, vB))
    va, vb, vza, vzb, vbig, vm, vj = 6, 7, 8, 9, E + 1, E + 2, E + 3
    A.i('s_lshl_b32 s%d, s%d, 5' % (S_T2, S_RB))
    A.i('s_lshl_b32 s%d, s%d, 2' % (S_KX, S_SUB))
    A.i('s_add_u32 s%d, s%d, s%d' % (S_T2, S_T2, S_KX))
    A.i('s_add_u32 s%d, s%d, s%d' % (S_T2, S_T2, S_NXT))
    A.i('s_mul_i32 s%d, s%d, 5120' % (S_WR, S_T2))
    A.i('v_mov_b32 v%d, 0x%x' % (vbig, BIG))
    A.i('s_lshl_b32 s%d, s%d, 1' % (S_KX, S_XN))
    A.i('v_lshlrev_b32 v%d, s%d, v%d' % (vm, S_KX, V_L))
    A.i('v_and_b32 v%d, 1, v%d' % (vj, V_G))
    A.i('v_lshlrev_b32 v%d, 2, v%d' % (vj, vj))
    A.i('v_lshrrev_b32 v%d, 1, v%d' % (tq, V_G))
    A.i('v_lshl_add_u32 v%d, v%d, 7, v%d' % (tq, tq, vj))
    A.i('s_lshl_b32 s%d, s%d, 9' % (S_KX, S_XN))
    A.i('v_lshl_add_u32 v%d, v%d, 3, v%d' % (va, vm, tq))
    A.i('v_add_u32 v%d, s%d, v%d' % (va, S_KX, va))
    A.i('v_lshlrev_b32 v%d, 2, v%d' % (va, va))
    A.i('s_lshl_b32 s%d, s%d, 7' % (S_KX, S_XN))
    A.i('s_add_u32 s%d, s%d, 1024' % (S_KX, S_KX))
    A.i('v_lshl_add_u32 v%d, v%d, 3, v%d' % (vb, vm, vj))
    A.i('v_add_u32 v%d, s%d, v%d' % (vb, S_KX, vb))
    A.i('v_lshlrev_b32 v%d, 2, v%d' % (vb, vb))
    A.i('v_cmp_gt_u32 vcc, 16, v%d' % vm)
    A.i('v_cndmask_b32 v%d, v%d, v%d, vcc' % (va, vbig, va))
    A.i('v_cndmask_b32 v%d, v%d, v%d, vcc' % (vb, vbig, vb))
    A.i('v_cmp_gt_u32 vcc, 2, v%d' % V_G)
    A.i('v_cndmask_b32 v%d, v%d, v%d, vcc' % (vb, vbig, vb))
    A.i('v_lshl_add_u32 v%d, v%d, 3, v%d' % (vza, V_L, tq))
    A.i('v_add_u32 v%d, 512, v%d' % (vza, vza))
    A.i('v_lshlrev_b32 v%d, 2, v%d' % (vza, vza))
    A.i('v_lshl_add_u32 v%d, v%d, 3, v%d' % (vzb, V_L, vj))
    A.i('v_add_u32 v%d, 1152, v%d' % (vzb, vzb))
    A.i('v_lshlrev_b32 v%d, 2, v%d' % (vzb, vzb))
    A.i('v_cndmask_b32 v%d, v%d, v%d, vcc' % (vzb, vbig, vzb))
    A.i('v_cmp_eq_u32 vcc, 1, v%d' % V_C)
    A.i('v_cndmask_b32 v%d, v%d, v%d, vcc' % (vza, vbig, vza))
    A.i('v_cndmask_b32 v%d, v%d, v%d, vcc' % (vzb, vbig, vzb))
    A.stamp(3)
    A.i('s_barrier')
    A.stamp(4)
    vP, vH = MISC + 3, MISC + 4
    A.i('s_lshl_b32 s%d, s%d, 6' % (S_T0, S_WM))
    A.i('v_add_u32 v%d, s%d, v%d' % (t1, S_T0, V_L))
    A.i('s_mul_i32 s%d, s%d, 5120' % (S_T0, S_WM))
    A.i('s_add_u32 s%d, s%d, %d' % (S_T0, S_T0, HO_OFF))
    A.i('v_lshlrev_b32 v%d, 4, v0' % vH)
    A.i('v_add_u32 v%d, s%d, v%d' % (vH, S_T0, vH))
    A.fence()
    A.i('s_cmp_eq_u32 s%d, 0' % S_WN)
    A.i('s_cbranch_scc1 L_k1_kv_k')
    A.i('v_mul_u32_u24 v%d, %d, v%d' % (vP, PV_RS, t1))
    A.i('v_mul_u32_u24 v%d, 40, v%d' % (t2, V_G))
    A.i('v_add3_u32 v%d, v%d, v%d, %s' % (vP, vP, t2, '0'))
    A.i('v_add_u32 v%d, %d, v%d' % (vP, PV_OFF, vP))
    for st in range(4):
        a = acc(0, st)
        for k in range(10):
            A.i('v_cvt_pk_bf16_f32 v%d, v%d, v%d' % (a + k, a + 2 * k, a + 2 * k + 1))
        for t in range(5):
            A.i('ds_write_b64 v%d, %s offset:%d' % (vP, vr(a + 2 * t, 2), st * 16 * PV_RS + 8 * t), tag='lw')
    A.i('v_add_u32 v%d, 32, v%d' % (t1, t1))
    A.i('s_barrier')
    for k in range(5):
        A.i('ds_read_b128 %s, v%d offset:%d' % (vr(V_ACC + 24 + 4 * k, 4), vH, 1024 * k), tag='ho')
    A.wait_lg('ho')
    for k in range(10):
        A.i('v_mov_b32 v%d, v%d' % (V_ACC + k, V_ACC + 24 + k))
        A.i('v_mov_b32 v%d, v%d' % (V_ACC + 12 + k, V_ACC + 34 + k))
    for k in (10, 11, 22, 23):
        A.i('v_mov_b32 v%d, 0' % (V_ACC + k))
    A.i('s_branch L_k1_kv_sm')
    A.raw('L_k1_kv_k:')
    A.hist = []
    for st in range(2):
        T, B = V_ACC + 20 * st, V_ACC + 12 * st
        for k in range(10):
            A.i('v_cvt_pk_bf16_f32 v%d, v%d, v%d' % (B + k, T + 2 * k, T + 2 * k + 1))
    for k in range(20):
        A.i('v_cvt_pk_bf16_f32 v%d, v%d, v%d' % (V_ACC + 40 + k, V_ACC + 40 + 2 * k, V_ACC + 41 + 2 * k))
    for k in range(5):
        A.i('ds_write_b128 v%d, %s offset:%d' % (vH, vr(V_ACC + 40 + 4 * k, 4), 1024 * k), tag='lw')
    for k in (10, 11, 22, 23):
        A.i('v_mov_b32 v%d, 0' % (V_ACC + k))
    A.wait_all(vm=False)
    A.i('s_barrier')
    A.raw('L_k1_kv_sm:')
    A.hist = []
    A.lgq = []
    A.stamp(5)
    A.i('v_mul_u32_u24 v%d, %d, v%d' % (vP, PK_RS, t1))
    A.i('v_mul_u32_u24 v%d, 80, v%d' % (t2, V_G))
    A.i('v_add_u32 v%d, v%d, v%d' % (vP, vP, t2))

    def out_k(st, chunks):
        for k in range(5):
            A.i('ds_write_b128 v%d, %s offset:%d' % (vP, vr(chunks[k], 4), st * 16 * PK_RS + 16 * k), tag='lw')
    phi_pipeline(A, V_ACC, 2, WPR, E, out_k)
    A.wait_all(vm=False)
    A.stamp(6)
    A.i('s_barrier')
    A.stamp(7)
    ONES, DK, DZ, FR = 16, 20, 32, 44
    for k in range(4):
        A.i('v_mov_b32 v%d, 0x3f803f80' % (ONES + k))

    def kv_reads(kk):
        f = FR + (kk % 6) * 16
        for mt in range(3):
            for jh in range(2):
                A.i('ds_read_b64_tr_b16 %s, v%d offset:%d' % (
                    vr(f + 4 * mt + 2 * jh, 2), vA0 if kk < 4 else vA1,
                    (32 * (kk % 4) + jh) * PK_RS + 32 * mt), tag=('kf', kk))
        for jh in range(2):
            A.i('ds_read_b64_tr_b16 %s, v%d offset:%d' % (vr(f + 12 + 2 * jh, 2), vB, (32 * kk + jh) * PV_RS),
                tag=('kf', kk))

    def kv_mfma(k2, withz):
        A.wait_lg(('kf', k2))
        f2 = FR + (k2 % 6) * 16
        for mt in range(3):
            c = '0' if k2 == 0 else vr(DK + 4 * mt, 4)
            A.i('v_mfma_f32_16x16x32_bf16 %s, %s, %s, %s' % (vr(DK + 4 * mt, 4), vr(f2 + 4 * mt, 4), vr(f2 + 12, 4), c))
            if withz:
                c = '0' if k2 == 0 else vr(DZ + 4 * mt, 4)
                A.i('v_mfma_f32_16x16x32_bf16 %s, %s, %s, %s' % (vr(DZ + 4 * mt, 4), vr(f2 + 4 * mt, 4), vr(ONES, 4), c))

    for kk in range(4):
        kv_reads(kk)
    A.i('s_cmp_eq_u32 s%d, 1' % S_XN)
    A.fence()
    A.i('s_cbranch_scc1 L_k1_kv_z')
    q0 = (list(A.lgq), list(A.vmq))
    for withz in (False, True):
        if withz:
            A.raw('L_k1_kv_z:')
            A.hist = []
            A.lgq, A.vmq = list(q0[0]), list(q0[1])
        for kk in range(8):
            if kk + 4 < 8:
                kv_reads(kk + 4)
            kv_mfma(kk, withz)
        for mt in range(3):
            A.i('buffer_store_dwordx4 %s, v%d, s[%d:%d], s%d offen offset:%d' % (
                vr(DK + 4 * mt, 4), va if mt < 2 else vb, S_O, S_O + 3, S_WR, 1024 * mt if mt < 2 else 0), tag='st')
            if withz:
                A.i('buffer_store_dwordx4 %s, v%d, s[%d:%d], s%d offen offset:%d' % (
                    vr(DZ + 4 * mt, 4), vza if mt < 2 else vzb, S_O, S_O + 3, S_WR, 1024 * mt if mt < 2 else 0), tag='st')
        A.stamp(13)
        A.stamp_end(38, 39, WS_STAMP, S_W, 8)
        A.i('s_endpgm')


def k1(A):
    A.raw('.globl k1_kernel\n.p2align 8\n.type k1_kernel,@function\nk1_kernel:')
    A.i('s_cmp_ge_u32 s2, 256')
    A.i('s_cbranch_scc1 L_k1_exit')
    A.i('s_load_dwordx16 s[16:31], s[0:1], 0')
    A.i('s_load_dwordx8 s[32:39], s[0:1], 64')
    A.i('s_and_b32 s%d, s2, 7' % S_T0)
    A.i('s_lshr_b32 s%d, s2, 3' % S_T1)
    A.i('s_lshl_b32 s%d, s%d, 5' % (S_IDX, S_T0))
    A.i('s_add_u32 s%d, s%d, s%d' % (S_IDX, S_IDX, S_T1))
    A.i('s_cmp_ge_u32 s%d, 252' % S_IDX)
    A.i('s_cbranch_scc1 L_k1_exit')
    A.i('s_sub_u32 s%d, s%d, 108' % (S_T0, S_IDX))
    A.i('s_cmp_lt_u32 s%d, 64' % S_IDX)
    A.i('s_cselect_b32 s%d, s%d, s%d' % (S_T0, S_IDX, S_T0))
    A.i('s_lshr_b32 s%d, s%d, 3' % (S_SUB, S_T0))
    A.i('s_and_b32 s%d, s%d, 7' % (S_RB, S_T0))
    A.i('s_sub_u32 s%d, s%d, 64' % (S_T0, S_IDX))
    A.i('s_mul_i32 s%d, s%d, 47' % (S_T1, S_T0))
    A.i('s_lshr_b32 s%d, s%d, 9' % (S_T1, S_T1))
    A.i('s_mul_i32 s%d, s%d, 11' % (S_T2, S_T1))
    A.i('s_sub_u32 s%d, s%d, s%d' % (S_T2, S_T0, S_T2))
    A.i('s_cmp_lt_u32 s%d, 44' % S_T0)
    A.i('s_cselect_b32 s%d, s%d, s%d' % (S_SUB, S_T1, S_SUB))
    A.i('s_cselect_b32 s%d, s%d, s%d' % (S_RB, S_T2, S_RB))
    A.i('s_lshr_b32 s%d, s%d, 3' % (S_OFF, S_IDX))
    A.i('s_mul_i32 s%d, s%d, 3' % (S_OFF, S_OFF))
    A.i('s_add_u32 s%d, s%d, s%d' % (S_OFF, S_OFF, S_RB))
    A.i('s_mul_i32 s%d, s%d, 205' % (S_T2, S_OFF))
    A.i('s_lshr_b32 s%d, s%d, 11' % (S_T2, S_T2))
    A.i('s_mul_i32 s%d, s%d, 10' % (S_T2, S_T2))
    A.i('s_sub_u32 s%d, s%d, s%d' % (S_OFF, S_OFF, S_T2))
    A.i('v_lshrrev_b32 v1, 6, v0')
    A.i('v_readfirstlane_b32 s%d, v1' % S_W)
    A.i('v_and_b32 v0, 63, v0')
    A.i('v_and_b32 v%d, 15, v0' % V_L)
    A.i('v_lshrrev_b32 v%d, 4, v0' % V_G)
    A.i('v_bfe_u32 v%d, v0, 2, 2' % V_R)
    A.i('v_and_b32 v%d, 3, v0' % V_C)
    A.i('s_and_b32 s%d, s%d, 3' % (S_WM, S_W))
    A.i('s_lshr_b32 s%d, s%d, 2' % (S_WN, S_W))
    A.i('s_waitcnt lgkmcnt(0)')
    srd(A, S_X, 16, 17, 2048 * 1280)
    A.fence()
    A.i('s_cmp_lt_u32 s%d, 64' % S_IDX)
    A.i('s_cbranch_scc1 L_k1_kv')
    A.i('s_cmp_lt_u32 s%d, 108' % S_IDX)
    A.i('s_cbranch_scc1 L_k1_q')
    for role in ('gu', 'q', 'kv'):
        k1_role(A, role)
        k1_loader(A, role)
    k1_repack(A)
    A.raw('L_k1_exit:')
    A.i('s_endpgm')


def kd(name, vgpr, accum, sgpr=102):
    return '''.amdhsa_kernel %s
  .amdhsa_next_free_vgpr %d
  .amdhsa_next_free_sgpr %d
  .amdhsa_accum_offset %d
  .amdhsa_group_segment_fixed_size 0
  .amdhsa_kernarg_size 96
  .amdhsa_user_sgpr_count 2
  .amdhsa_user_sgpr_kernarg_segment_ptr 1
  .amdhsa_system_sgpr_workgroup_id_x 1
.end_amdhsa_kernel
''' % (name, vgpr, sgpr, accum)


if __name__ == '__main__':
    out = sys.argv[1] if len(sys.argv) > 1 else 'k.s'
    only1 = len(sys.argv) > 2 and sys.argv[2] == 'k1'
    A = Asm()
    st = os.environ.get('STAMP', '')
    if '1' in st:
        A.stamp_on = True
        A.stamp_v = 19
        A.stamp_s = 76
    A.raw('; @launch kernel=k1_kernel grid=(256,1,1) block=(768,1,1) lds=%d' % (K1_LDS + 1024))
    if not only1:
        from gen2 import k2, K2_LDS, K2_VGPR, K2_ACC
        K2_THREADS = 256
        A.raw('; @launch kernel=k2_kernel grid=(256,1,1) block=(%d,1,1) lds=%d' % (K2_THREADS, K2_LDS))
    A.raw('.amdgcn_target "amdgcn-amd-amdhsa--gfx950"\n.text')
    k1(A)
    if not only1:
        A.hist = []; A.vmq = []; A.lgq = []
        A.stamp_on = '2' in st
        A.stamp_v = 255
        A.stamp_s = None
        k2(A)
    A.raw('.section .rodata,"a"\n.p2align 6')
    A.raw(kd('k1_kernel', K1_VGPR, K1_VGPR))
    if not only1:
        A.raw('.p2align 6')
        A.raw(kd('k2_kernel', K2_VGPR, K2_ACC))
    open(out, 'w').write(A.text())
    print('instrs', A.count, 'nops', A.nops)
```

```python
import sys, math, os
sys.path.insert(0, 'dev')
from asmlib import *
from gen import (srd, f32bits, WS_H, WS_PQ, WS_KVP, WS_KVF, WS_FL, WS_G, WS_WF, WS_STAMP, H_BYTES, PQ_BYTES, KVP_BYTES,
                 KVF_BYTES, WF_BYTES, BIG)

RSF = 336
K2_LDS = 60 * 1024
K2_ACC = 256
K2_VGPR = 512

S_RB, S_CB, S_W = 4, 5, 6
S_H, S_PQ, S_KVP, S_KVF, S_FL, S_G, S_WF, S_OUT = 40, 44, 48, 52, 56, 60, 64, 72
S_A0, S_SA, S_SW, S_T0, S_T1, S_T2, S_T3, S_PSEL, S_CNT, S_HB, S_PQB, S_HB0, S_WB0 = 76, 77, 78, 80, 81, 82, 83, 84, 85, 86, 87, 88, 89

V_L, V_G, V_R, V_C = 1, 2, 3, 4
V_A = 5
V_PQ0 = 10
V_PQ1 = 14
V_L16 = 18
V_L16B = 19
V_KV2 = 20
V_P16, V_P8 = 21, 22
V_GT = 28
V_T = 32
V_ACC = 40
V_OOP = 120
V_D = 200
V_SV = 232
V_FLG = 252

A_R = 0
A_HD = 144


def chunk_decode(A, inst, vpos, vch, tmp):
    A.i('v_add_u32 v%d, %d, v0' % (vch, 64 * inst))
    A.i('v_mul_u32_u24 v%d, 205, v%d' % (vpos, vch))
    A.i('v_lshrrev_b32 v%d, 11, v%d' % (vpos, vpos))
    A.i('v_mul_u32_u24 v%d, 10, v%d' % (tmp, vpos))
    A.i('v_sub_u32 v%d, v%d, v%d' % (vch, vch, tmp))


def producer_loads(A, sidx, ssel, base, tag):
    A.i('s_mul_i32 s%d, s%d, 640' % (S_T0, sidx))
    A.i('s_add_u32 s%d, s%d, s%d' % (S_T0, S_T0, ssel))
    for rb in range(8):
        A.i('buffer_load_dwordx4 %s, v%d, s[%d:%d], s%d offen' % (vr(base + 4 * rb, 4), V_P16, S_KVP, S_KVP + 3, S_T0),
            tag=tag)
        if rb < 7:
            A.i('s_add_u32 s%d, s%d, %d' % (S_T0, S_T0, 32 * 5120))


def producer_store(A, sidx, ssel, base, tag):
    for step in (16, 8, 4):
        for k in range(step):
            A.i('v_add_f32 v%d, v%d, v%d' % (base + k, base + k, base + step + k))
    A.i('v_cvt_pk_bf16_f32 v%d, v%d, v%d' % (base, base, base + 1))
    A.i('v_cvt_pk_bf16_f32 v%d, v%d, v%d' % (base + 1, base + 2, base + 3))
    A.i('s_mul_i32 s%d, s%d, 320' % (S_T0, sidx))
    A.i('s_add_u32 s%d, s%d, s%d' % (S_T0, S_T0, ssel))
    A.i('buffer_store_dwordx2 %s, v%d, s[%d:%d], s%d offen sc1' % (vr(base, 2), V_P8, S_KVF, S_KVF + 3, S_T0), tag=tag)


def k2(A):
    A.raw('.globl k2_kernel\n.p2align 8\n.type k2_kernel,@function\nk2_kernel:')
    A.i('s_cmp_ge_u32 s2, 256')
    A.i('s_cbranch_scc1 L_k2_exit')
    A.i('s_load_dwordx8 s[32:39], s[0:1], 64')
    A.i('s_and_b32 s3, s2, 7')
    A.i('s_lshr_b32 s7, s2, 3')
    A.i('s_lshl_b32 s3, s3, 2')
    A.i('s_lshr_b32 s%d, s7, 3' % S_RB)
    A.i('s_add_u32 s%d, s%d, s3' % (S_RB, S_RB))
    A.i('s_and_b32 s%d, s7, 7' % S_CB)
    A.i('v_lshrrev_b32 v1, 6, v0')
    A.i('v_readfirstlane_b32 s%d, v1' % S_W)
    A.i('v_and_b32 v0, 63, v0')
    A.i('v_and_b32 v%d, 15, v0' % V_L)
    A.i('v_lshrrev_b32 v%d, 4, v0' % V_G)
    t0, t1, t2, t3 = V_T, V_T + 1, V_T + 2, V_T + 3
    A.i('v_lshlrev_b32 v%d, 4, v0' % V_L16)
    A.i('v_add_u32 v%d, 4096, v%d' % (V_L16B, V_L16))
    for st in range(4):
        A.i('v_add_u32 v%d, %d, v%d' % (V_A + st, st * 54 * 1024, V_L16))
    A.i('s_mul_i32 s%d, s%d, 14' % (S_A0, S_W))
    A.i('s_cmp_eq_u32 s%d, 3' % S_W)
    A.i('s_cselect_b32 s%d, 1, 0' % S_T0)
    A.i('s_sub_u32 s%d, s%d, s%d' % (S_A0, S_A0, S_T0))
    A.i('s_mul_i32 s%d, s%d, 216' % (S_HB0, S_RB))
    A.i('s_add_u32 s%d, s%d, s%d' % (S_HB0, S_HB0, S_A0))
    A.i('s_lshl_b32 s%d, s%d, 10' % (S_HB0, S_HB0))
    A.i('s_mul_i32 s%d, s%d, 74' % (S_WB0, S_CB))
    A.i('s_add_u32 s%d, s%d, s%d' % (S_T0, S_WB0, S_A0))
    A.i('s_mul_i32 s%d, s%d, 5120' % (S_SW, S_T0))
    A.i('s_mov_b32 s%d, s%d' % (S_SA, S_HB0))
    A.i('s_waitcnt lgkmcnt(0)')
    srd(A, S_WF, 38, 39, WF_BYTES, WS_WF)
    srd(A, S_H, 38, 39, H_BYTES, WS_H)
    A.stamp(0)
    A.stamp_rt(8)

    def ld_w(n, soff):
        b = A_R + (n % 4) * 36
        for t in range(5):
            A.i('buffer_load_dwordx4 %s, v%d, s[%d:%d], s%d offen offset:%d' % (
                ar(b + 4 * t, 4), V_L16 if t < 4 else V_L16B, S_WF, S_WF + 3, soff, 1024 * t if t < 4 else 0), tag=('w', n))

    def L_H(n):
        if n == 13:
            A.i('s_cmp_ge_u32 s%d, 2' % S_W)
            A.i('s_cselect_b32 s%d, 0x%x, s%d' % (S_SA, BIG, S_SA))
            A.i('s_cselect_b32 s%d, 0x%x, s%d' % (S_SW, BIG, S_SW))
        ld_w(n, S_SW)
        b = A_R + (n % 4) * 36 + 20
        for st in range(4):
            A.i('buffer_load_dwordx4 %s, v%d, s[%d:%d], s%d offen' % (ar(b + st * 4, 4), V_A + st, S_H, S_H + 3, S_SA),
                tag=('w', n))
        if n < 13:
            A.i('s_add_u32 s%d, s%d, 1024' % (S_SA, S_SA))
            A.i('s_add_u32 s%d, s%d, 5120' % (S_SW, S_SW))

    L_H(0)
    L_H(1)
    A.i('v_bfe_u32 v%d, v0, 2, 2' % V_R)
    A.i('v_and_b32 v%d, 3, v0' % V_C)
    srd(A, S_PQ, 38, 39, PQ_BYTES, WS_PQ)
    srd(A, S_KVP, 38, 39, KVP_BYTES, WS_KVP)
    srd(A, S_KVF, 38, 39, KVF_BYTES, WS_KVF)
    srd(A, S_FL, 38, 39, 1024, WS_FL)
    srd(A, S_G, 38, 39, 8192, WS_G)
    srd(A, S_OUT, 34, 35, 2048 * 1280)
    A.i('v_mov_b32 v%d, 0x%x' % (t2, BIG))
    A.i('v_cmp_gt_u32 vcc, 40, v0')
    A.i('v_lshlrev_b32 v%d, 3, v0' % t1)
    A.i('v_cndmask_b32 v%d, v%d, v%d, vcc' % (V_P16, t2, V_L16))
    A.i('v_cndmask_b32 v%d, v%d, v%d, vcc' % (V_P8, t2, t1))
    A.i('s_cmp_eq_u32 s%d, 0' % S_W)
    A.i('s_cselect_b32 s%d, 0, 0x%x' % (S_PSEL, BIG))
    producer_loads(A, 2, S_PSEL, V_D, 'pl')
    L_H(2)
    A.i('v_lshlrev_b32 v%d, 4, v%d' % (V_KV2, V_L))
    A.i('v_mul_u32_u24 v%d, %d, v%d' % (t0, 32 * 1280, V_G))
    A.i('v_add3_u32 v%d, v%d, v%d, %s' % (V_PQ1, t0, V_KV2, '0'))
    A.i('v_add_u32 v%d, 1024, v%d' % (V_PQ1, V_PQ1))
    for st in range(4):
        A.i('v_add_u32 v%d, %d, v%d' % (V_PQ0 + st, st * 32 * 1280, V_L16))
    for st, (lo, hi) in enumerate([(0xffff, 0), (0xffff0000, 0), (0, 0xffff), (0, 0xffff0000)]):
        A.i('s_mov_b32 s%d, 0x%x' % (8 + 2 * st, lo))
        A.i('s_mov_b32 s%d, 0x%x' % (9 + 2 * st, hi))
    A.i('s_lshl_b32 s%d, s%d, 7' % (S_PQB, S_RB))
    A.i('s_lshl_b32 s%d, s%d, 3' % (S_T0, S_W))
    A.i('s_add_u32 s%d, s%d, s%d' % (S_PQB, S_PQB, S_T0))
    A.i('s_mul_i32 s%d, s%d, 1280' % (S_PQB, S_PQB))
    A.i('s_mul_i32 s%d, s%d, %d' % (S_HB, S_W, 8 * 2560))
    A.i('s_lshl_b32 s%d, s%d, 8' % (S_T0, S_RB))
    A.i('v_lshlrev_b32 v%d, 2, v%d' % (t3, V_L))
    for st in range(4):
        A.i('buffer_load_dword v%d, v%d, s[%d:%d], s%d offen offset:%d' % (V_GT + st, t3, S_G, S_G + 3, S_T0, 64 * st), tag='g')

    def hslot(j):
        return [144, 176, 208, 0][j % 4]

    def L_Opq(j):
        b = hslot(j)
        A.i('s_add_u32 s%d, s%d, %d' % (S_T1, S_PQB, j * 1280))
        for st in range(4):
            A.i('buffer_load_dwordx4 %s, v%d, s[%d:%d], s%d offen' % (
                ar(b + st * 4, 4), V_PQ0 + st, S_PQ, S_PQ + 3, S_T1), tag=('o', j))
        A.i('buffer_load_dwordx4 %s, v%d, s[%d:%d], s%d offen' % (
            vr(V_OOP + 64 + (j % 4) * 4, 4), V_PQ1, S_PQ, S_PQ + 3, S_T1), tag=('o', j))

    def L_Okv(j):
        b = hslot(j) + 16
        A.i('s_add_u32 s%d, s%d, %d' % (S_T0, S_HB, j * 2560))
        for k in range(4):
            A.i('buffer_load_dwordx4 %s, v%d, s[%d:%d], s%d offen offset:%d%s' % (
                ar(b + 4 * k, 4), V_L16 if k < 2 else V_KV2, S_KVF, S_KVF + 3, S_T0, [0, 1024, 2048, 2304][k],
                '' if os.environ.get('KVPLAIN') else ' sc1'), tag=('o', j))

    def L_W(e):
        A.i('s_mul_i32 s%d, s%d, 5' % (S_T0, S_W))
        A.i('s_add_u32 s%d, s%d, s%d' % (S_T0, S_T0, S_WB0))
        A.i('s_add_u32 s%d, s%d, %d' % (S_T0, S_T0, 54 + e))
        A.i('s_mul_i32 s%d, s%d, 5120' % (S_T0, S_T0))
        b = wslot(e)
        for t in range(5):
            A.i('buffer_load_dwordx4 %s, v%d, s[%d:%d], s%d offen offset:%d' % (
                ar(b + 4 * t, 4), V_L16 if t < 4 else V_L16B, S_WF, S_WF + 3, S_T0, 1024 * t if t < 4 else 0), tag=('wo', e))

    def wslot(e):
        return [32, 52, 72, 92, 112][e]

    def acc(st, t):
        return V_ACC + (st * 5 + t) * 4

    def C_G(wbase, bsrc, first):
        for t in range(5):
            for st in range(4):
                c = '0' if first else vr(acc(st, t), 4)
                A.i('v_mfma_f32_16x16x32_bf16 %s, %s, %s, %s' % (vr(acc(st, t), 4), ar(wbase + 4 * t, 4), bsrc(st), c))

    for n in range(14):
        if n + 3 <= 13:
            L_H(n + 3)
        if n == 1:
            A.wait_vm('pl')
            producer_store(A, 2, S_PSEL, V_D, 'ps')
        if n == 3:
            A.wait_vm(('w', 5))
            A.i('v_mov_b32 v%d, 0x%x' % (t0, BIG))
            A.i('v_cmp_eq_u32 vcc, 0, v0')
            A.i('v_cndmask_b32 v%d, v%d, v0, vcc' % (t0, t0))
            A.i('v_mov_b32 v%d, 1' % t1)
            A.i('s_lshl_b32 s%d, s2, 2' % S_T0)
            A.i('s_add_u32 s%d, s%d, s%d' % (S_T0, S_T0, S_PSEL))
            if not os.environ.get('NOPUB'):
                A.i('buffer_store_dword v%d, v%d, s[%d:%d], s%d offen sc1' % (t1, t0, S_FL, S_FL + 3, S_T0), tag='fs')
        if n == 9:
            A.i('v_lshlrev_b32 v%d, 2, v0' % t2)
            A.i('s_lshl_b32 s%d, s%d, 8' % (S_T3, S_W))
            A.i('buffer_load_dword v%d, v%d, s[%d:%d], s%d offen sc1' % (V_FLG, t2, S_FL, S_FL + 3, S_T3), tag='fl')
        if n == 11:
            L_Opq(0)
            A.wait_vm('fl')
            A.i('v_cmp_ne_u32 vcc, 0, v%d' % V_FLG)
            A.fence()
            A.i('s_cmp_eq_u64 vcc, exec')
            A.i('s_cbranch_scc1 L_k2_ready')
            A.i('s_mov_b32 s%d, 0' % S_CNT)
            A.raw('L_k2_poll:')
            A.i('s_sleep 8')
            A.i('buffer_load_dword v%d, v%d, s[%d:%d], s%d offen sc1' % (V_FLG, t2, S_FL, S_FL + 3, S_T3), tag='fl')
            A.i('s_waitcnt vmcnt(0)')
            A.i('v_cmp_ne_u32 vcc, 0, v%d' % V_FLG)
            A.fence()
            A.i('s_cmp_eq_u64 vcc, exec')
            A.i('s_cbranch_scc1 L_k2_ready')
            A.i('s_add_u32 s%d, s%d, 1' % (S_CNT, S_CNT))
            A.i('s_cmp_lt_u32 s%d, %d' % (S_CNT, int(os.environ.get('SPIN', 2000))))
            A.i('s_cbranch_scc1 L_k2_poll')
            A.i('s_lshl_b32 s%d, s%d, 6' % (S_CNT, S_W))
            A.i('s_add_u32 s%d, s%d, 64' % (S_T2, S_CNT))
            A.i('s_mov_b32 s%d, 0' % S_T1)
            A.raw('L_k2_self:')
            producer_loads(A, S_CNT, S_T1, V_D, 'pl')
            A.i('s_waitcnt vmcnt(0)')
            producer_store(A, S_CNT, S_T1, V_D, 'ps')
            A.i('s_waitcnt vmcnt(0)')
            A.fence()
            A.i('s_add_u32 s%d, s%d, 1' % (S_CNT, S_CNT))
            A.i('s_cmp_lt_u32 s%d, s%d' % (S_CNT, S_T2))
            A.i('s_cbranch_scc1 L_k2_self')
            A.raw('L_k2_ready:')
            A.vmq = [t for t in A.vmq if t not in ('fl', 'pl', 'ps')]
            A.hist = []
            if os.environ.get('KVPLAIN') == '2':
                A.i('buffer_inv sc1')
            L_Okv(0)
        if n in (12, 13):
            L_Opq(n - 11); L_Okv(n - 11)
        A.wait_vm(('w', n))
        b = A_R + (n % 4) * 36
        C_G(b, lambda st: ar(b + 20 + st * 4, 4), n == 0)
        if n in (0, 5, 10):
            A.stamp(1 + n // 5)
    A.stamp(4)
    L_Opq(3); L_Okv(3)
    L_W(0)
    A.wait_vm('g')
    OP = V_OOP
    O4 = V_OOP + 32
    for j in range(8):
        b = hslot(j)
        p = j // 2
        A.wait_vm(('o', j))
        if j in (0, 1, 3, 5):
            A.stamp({0: 13, 1: 10, 3: 11, 5: 12}[j])
        XB, X = V_OOP + 48, V_OOP + 64 + (j % 4) * 4
        for st in range(4):
            d = V_D + st * 8
            for mt in range(2):
                A.i('v_mfma_f32_16x16x32_bf16 %s, %s, %s, 0' % (vr(d + 4 * mt, 4), ar(b + 16 + 4 * mt, 4), ar(b + st * 4, 4)))
            for i in range(4):
                A.i('v_cndmask_b32 v%d, 0, v%d, s[%d:%d]' % (XB + 4 * st + i, X + i, 8 + 2 * st, 9 + 2 * st))
        for st in range(4):
            d = V_D + st * 8
            for mt in range(2):
                A.i('v_mfma_f32_16x16x32_bf16 %s, %s, %s, %s' % (vr(d + 4 * mt, 4), ar(b + 24 + 4 * mt, 4),
                                                               vr(XB + 4 * st, 4), vr(d + 4 * mt, 4)))
        if j + 4 < 8:
            L_Opq(j + 4); L_Okv(j + 4)
        if j < 4:
            L_W(j + 1)
        if j == 0:
            for st in range(4):
                A.i('v_sub_f32 v%d, 1.0, v%d' % (V_T + 2 * st, V_GT + st))
            for st in range(4):
                for k in range(0, 20, 2):
                    A.i('v_pk_mul_f32 %s, %s, %s op_sel_hi:[1,0]' % (vr(acc(st, 0) + k, 2), vr(acc(st, 0) + k, 2), vr(V_T + 2 * st, 2)))
        VL = []
        for st in range(4):
            d = V_D + st * 8
            VL.append('v_add_f32 v%d, 0x%08x, v%d' % (d + 6, f32bits(1e-6), d + 5))
        for st in range(4):
            d = V_D + st * 8
            VL.append('v_rcp_f32 v%d, v%d' % (d + 6, d + 6))
        for st in range(4):
            d = V_D + st * 8
            VL.append('v_mul_f32 v%d, v%d, v%d' % (d + 6, d + 6, V_GT + st))
        for st in range(4):
            d = V_D + st * 8
            for h in range(2):
                VL.append('v_pk_mul_f32 %s, %s, %s op_sel_hi:[1,0]' % (vr(d + 2 * h, 2), vr(d + 2 * h, 2), vr(d + 6, 2)))
            VL.append('v_mul_f32 v%d, v%d, v%d' % (V_SV + st if j % 2 == 0 else d + 4, d + 4, d + 6))
        for st in range(4):
            d = V_D + st * 8
            o_ = OP + ((p % 2) * 4 + st) * 4 + 2 * (j % 2)
            VL.append('v_cvt_pk_bf16_f32 v%d, v%d, v%d' % (o_, d, d + 1))
            VL.append('v_cvt_pk_bf16_f32 v%d, v%d, v%d' % (o_ + 1, d + 2, d + 3))
            if j % 2 == 1:
                VL.append('v_cvt_pk_bf16_f32 v%d, v%d, v%d' % (O4 + st * 4 + p, V_SV + st, d + 4))
        ML = []
        if p >= 1:
            pp = p - 1
            if j % 2 == 0:
                A.wait_vm(('wo', pp))
            allm = ['v_mfma_f32_16x16x32_bf16 %s, %s, %s, %s' % (vr(acc(st, t), 4), ar(wslot(pp) + 4 * t, 4),
                                                               vr(OP + ((pp % 2) * 4 + st) * 4, 4), vr(acc(st, t), 4))
                    for t in range(5) for st in range(4)]
            ML = allm[:10] if j % 2 == 0 else allm[10:]
        for m in ML[:3]:
            A.i(m)
        ML = ML[3:]
        for k, ins in enumerate(VL):
            A.i(ins)
            if ML and k % 4 == 3:
                A.i(ML.pop(0))
        for m in ML:
            A.i(m)
    A.wait_vm(('wo', 3))
    C_G(wslot(3), lambda st: vr(OP + (4 + st) * 4, 4), False)
    A.stamp(5)
    A.wait_vm(('wo', 4))
    C_G(wslot(4), lambda st: vr(O4 + st * 4, 4), False)
    A.stamp(6)

    VW, VRD, VO, VO2 = V_A, V_A + 1, V_A + 2, V_A + 3
    A.i('s_mul_i32 s%d, s%d, 15360' % (S_T0, S_W))
    A.i('v_add_u32 v%d, s%d, v%d' % (VRD, S_T0, V_L16))
    A.i('s_lshl_b32 s%d, s%d, 4' % (S_T0, S_W))
    A.i('s_lshl_b32 s%d, s%d, 6' % (S_T1, S_RB))
    A.i('s_add_u32 s%d, s%d, s%d' % (S_T1, S_T1, S_T0))
    A.i('v_add_u32 v%d, s%d, v%d' % (t0, S_T1, V_L))
    A.i('v_mul_u32_u24 v%d, 1280, v%d' % (t0, t0))
    A.i('s_mul_i32 s%d, s%d, 160' % (S_T2, S_CB))
    A.i('v_add_u32 v%d, s%d, v%d' % (t0, S_T2, t0))
    A.i('v_lshl_add_u32 v%d, v%d, 4, v%d' % (VO, V_G, t0))
    A.i('v_lshl_add_u32 v%d, v%d, 3, v%d' % (VO2, V_G, t0))
    A.fence()
    for w in range(1, 4):
        A.i('s_cmp_eq_u32 s%d, %d' % (S_W, w))
        A.i('s_cbranch_scc1 L_k2_red%d' % w)
    R0 = V_OOP
    for w in range(4):
        if w:
            A.raw('L_k2_red%d:' % w)
        A.hist = []; A.lgq = []
        for d in range(1, 4):
            dst = (w + d) & 3
            slot = (w - dst - 1) & 3
            for t in range(5):
                A.i('ds_write_b128 v%d, %s offset:%d' % (V_L16, vr(acc(dst, t), 4), (dst * 15 + slot * 5 + t) * 1024), tag='rw')
        A.wait_all(vm=False)
        A.i('s_barrier')
        for k in range(15):
            A.i('ds_read_b128 %s, v%d offset:%d' % (vr(R0 + 4 * k, 4), VRD, 1024 * k), tag=('rr', k))
        a = acc(w, 0)
        for sl in range(3):
            for t in range(5):
                A.wait_lg(('rr', sl * 5 + t))
                for h in range(2):
                    A.i('v_pk_add_f32 %s, %s, %s' % (vr(a + 4 * t + 2 * h, 2), vr(a + 4 * t + 2 * h, 2),
                                                    vr(R0 + (sl * 5 + t) * 4 + 2 * h, 2)))
        for k in range(10):
            A.i('v_cvt_pk_bf16_f32 v%d, v%d, v%d' % (V_D + k, a + 2 * k, a + 2 * k + 1))
        A.i('buffer_store_dwordx4 %s, v%d, s[%d:%d], 0 offen' % (vr(V_D, 4), VO, S_OUT, S_OUT + 3), tag='st')
        A.i('buffer_store_dwordx4 %s, v%d, s[%d:%d], 0 offen offset:64' % (vr(V_D + 4, 4), VO, S_OUT, S_OUT + 3), tag='st')
        A.i('buffer_store_dwordx2 %s, v%d, s[%d:%d], 0 offen offset:128' % (vr(V_D + 8, 2), VO2, S_OUT, S_OUT + 3), tag='st')
        if w < 3:
            A.i('s_branch L_k2_fin')
    A.raw('L_k2_fin:')
    A.hist = []
    A.stamp(7)
    A.stamp_end(38, 39, WS_STAMP + 0x80000, S_W, 4)
    A.raw('L_k2_exit:')
    A.i('s_endpgm')
```

```python
import sys, math, os
sys.path.insert(0, 'dev')
from asmlib import *

NAME = 'gated_mix__linear_kernel_hedgehog__geglu_ffn__prompt'
WS_H = 0
WS_PQ = 0x700000
WS_KVP = 0xC00000
WS_KVF = 0xE00000
WS_FL = 0xE20000
WS_G = 0xE30000
WS_STAMP = 0xF00000
WS_WF = 0x1000000
WS_OF = 0x1400000
OF_BYTES = 128 * 20 * 1024
FL_BYTES = 1024
WF_BYTES = 8 * 74 * 5 * 1024
H_BYTES = 2048 * 1728 * 2
PQ_BYTES = 2048 * 1280 * 2
KVP_BYTES = 8 * 32 * 1280 * 4
KVF_BYTES = 32 * 1280 * 2
LOG2E = 1.4426950408889634
BIG = 0x40000000


SC = ' sc1'


def f32bits(x):
    import struct
    return struct.unpack('<I', struct.pack('<f', x))[0]


def srd(A, d, lo, hi, nrec, add=0):
    if add:
        A.i('s_add_u32 s%d, s%d, 0x%x' % (d, lo, add))
        A.i('s_addc_u32 s%d, s%d, 0' % (d + 1, hi))
        A.i('s_and_b32 s%d, s%d, 0xffff' % (d + 1, d + 1))
    else:
        A.i('s_mov_b32 s%d, s%d' % (d, lo))
        A.i('s_and_b32 s%d, s%d, 0xffff' % (d + 1, hi))
    A.i('s_mov_b32 s%d, 0x%x' % (d + 2, nrec))
    A.i('s_mov_b32 s%d, 0x20000' % (d + 3))


NBUF = 5
XBUF = 32768
WRING = 3 * XBUF
WPHI = 151552
GWL = WPHI + 8192
K1_LDS = 159744
K1_VGPR = 168
PK_OFF, PK_RS = 0, 336
PV_OFF, PV_RS = 86016, 176
HO_OFF = 131072

S_IDX, S_C, S_RB, S_W = 3, 4, 5, 6
S_X, S_WT, S_O, S_P, S_GW, S_G, S_FL, S_WU = 40, 44, 48, 52, 56, 60, 64, 68
S_T0, S_T1, S_T2, S_CL2E, S_SUB = 72, 73, 74, 98, 99
S_NXT, S_WR, S_KX, S_KW, S_CNT, S_WM, S_WN = 8, 9, 10, 11, 12, 15, 7

V_XA = 1
V_XB = 3
V_WA = 5
V_WB = 8
V_GWA = 7
V_L, V_G, V_R, V_C = 10, 11, 12, 13
V_T = 14
S_XN = 13
S_OFF = 14
V_ACC = 16


def role_params(role):
    gu = role == 'gu'
    kv = role == 'kv'
    P = dict(gu=gu, kv=kv)
    P['nsub'] = 4 if gu else 2
    P['CH'] = 6 if gu else 10
    P['RS'] = P['CH'] * 16
    P['cstride'] = 8 if gu else 40
    P['tstride'] = 32 if gu else 8
    P['rowbytes'] = 3456 if gu else 3840
    P['SUBSZ'] = 32 * P['RS']
    P['BUFSZ'] = P['nsub'] * P['SUBSZ']
    P['NWI'] = P['nsub'] * 32 * P['CH'] // 64
    return P


def k1_loader(A, role):
    P = role_params(role)
    gu, kv = P['gu'], P['kv']
    BUFSZ, CH, rowbytes, NWI = P['BUFSZ'], P['CH'], P['rowbytes'], P['NWI']
    ROWS = 192 if role == 'q' else 256
    NXI = ROWS // 32
    A.label('L_k1_ld_' + role)
    A.hist = []; A.vmq = []; A.lgq = []
    t0, t1, t2, t3 = 14, 15, 1, 2
    A.i('s_setprio 3')
    A.i('s_mov_b32 s%d, 0' % S_WR)
    A.i('s_mov_b32 s%d, 0' % S_CNT)
    A.i('s_and_b32 s%d, s%d, 1' % (S_WM, S_W))
    A.i('s_cmp_ge_u32 s%d, 10' % S_W)
    A.i('s_cbranch_scc1 L_k1_ldw_' + role)

    A.i('v_and_b32 v%d, 7, v0' % t0)
    A.i('v_xor_b32 v%d, v%d, v%d' % (t0, t0, V_G))
    A.i('v_lshrrev_b32 v%d, 3, v0' % t1)
    A.i('v_mul_u32_u24 v%d, 1280, v%d' % (t1, t1))
    A.i('v_lshl_add_u32 v16, v%d, 4, v%d' % (t0, t1))
    A.i('v_xor_b32 v%d, 4, v%d' % (t0, t0))
    A.i('v_lshl_add_u32 v17, v%d, 4, v%d' % (t0, t1))
    A.i('v_add_u32 v17, %d, v17' % (8 * 1280))
    for j in range(2, NXI):
        A.i('v_add_u32 v%d, %d, v%d' % (16 + j, (j // 2) * 16 * 1280, 16 + (j & 1)))
    A.i('s_mul_i32 s%d, s%d, %d' % (S_KX, S_RB, ROWS * 1280))
    A.i('s_mul_i32 s%d, s%d, %d' % (S_T0, S_WM, ROWS // 2 * 1280))
    A.i('s_add_u32 s%d, s%d, s%d' % (S_KW, S_KX, S_T0))
    A.i('s_lshl_b32 s%d, s%d, 7' % (S_NXT, S_OFF))
    A.i('s_add_u32 s%d, s%d, s%d' % (S_KX, S_KW, S_NXT))
    A.i('s_mul_i32 s%d, s%d, %d' % (S_WN, S_WM, ROWS // 2 * 128))

    def issue_x(h):
        if h == 0:
            A.i('s_add_u32 m0, s%d, s%d' % (S_WR, S_WN))
            A.i('s_mov_b32 s%d, s%d' % (S_T0, S_KX))
        else:
            A.i('s_add_u32 m0, s%d, s%d' % (S_WR, S_WN))
            A.i('s_add_u32 m0, m0, %d' % (NXI * 1024))
            A.i('s_add_u32 s%d, s%d, %d' % (S_T0, S_KX, ROWS // 4 * 1280))
        for j in range(NXI):
            A.i('buffer_load_dwordx4 v%d, s[%d:%d], s%d offen lds' % (16 + j, S_X, S_X + 3, S_T0))
            if j < NXI - 1:
                A.i('s_add_u32 m0, m0, 1024')
        if h == 1:
            A.i('s_add_u32 s%d, s%d, 128' % (S_NXT, S_NXT))
            A.i('s_cmp_eq_u32 s%d, 1280' % S_NXT)
            A.i('s_cselect_b32 s%d, 0, s%d' % (S_NXT, S_NXT))
            A.i('s_add_u32 s%d, s%d, s%d' % (S_KX, S_KW, S_NXT))
            A.i('s_add_u32 s%d, s%d, %d' % (S_WR, S_WR, XBUF))
            A.i('s_cmp_eq_u32 s%d, %d' % (S_WR, 3 * XBUF))
            A.i('s_cselect_b32 s%d, 0, s%d' % (S_WR, S_WR))
    if os.environ.get('THR', '1') == '1':
        issue_x(0); issue_x(1)
        if not kv:
            k1_repack_setup(A)
        A.i('s_waitcnt vmcnt(0)')
        A.i('s_barrier')
        issue_x(0); issue_x(1)
    else:
        issue_x(0); issue_x(1); issue_x(0); issue_x(1)
        A.i('s_waitcnt vmcnt(16)')
        A.i('s_barrier')
    A.raw('L_k1_ldx_loop_%s:' % role)
    A.i('s_barrier')
    issue_x(0)
    A.i('s_waitcnt vmcnt(%d)' % NXI)
    A.i('s_barrier')
    issue_x(1)
    A.i('s_add_u32 s%d, s%d, 1' % (S_CNT, S_CNT))
    A.i('s_cmp_lt_u32 s%d, 8' % S_CNT)
    A.i('s_cbranch_scc1 L_k1_ldx_loop_%s' % role)
    A.i('s_barrier')
    if not kv:
        A.i('s_branch L_k1_rp')
    else:
        A.i('s_waitcnt vmcnt(0)')
        A.i('s_barrier')
        A.i('s_barrier')
        A.i('s_barrier')
        A.i('s_endpgm')

    A.raw('L_k1_ldw_%s:' % role)
    A.hist = []
    if gu:
        A.i('s_cmp_eq_u32 s%d, 0' % S_WM)
        A.i('s_cselect_b32 s%d, s26, s28' % S_T0)
        A.i('s_cselect_b32 s%d, s27, s29' % S_T1)
        srd(A, S_WT, S_T0, S_T1, 640 * 3456)
        A.i('s_mul_i32 s%d, s%d, 192' % (S_T0, S_SUB))
    else:
        srd(A, S_WT, 18, 19, 640 * 3840)
        if role == 'q':
            A.i('s_mul_i32 s%d, s%d, 320' % (S_T0, S_SUB))
            wpb = 6400
        else:
            A.i('s_mul_i32 s%d, s%d, 160' % (S_T0, S_SUB))
            A.i('s_add_u32 s%d, s%d, 1280' % (S_T0, S_T0))
            wpb = 3200
        A.i('s_mul_i32 s%d, s%d, %d' % (S_T2, S_WM, 160 if role == 'q' else 1280))
        A.i('s_add_u32 s%d, s%d, s%d' % (S_T0, S_T0, S_T2))
        A.i('s_mul_i32 s%d, s%d, %d' % (S_T2, S_SUB, wpb))
        A.i('s_add_u32 s%d, s20, s%d' % (S_P, S_T2))
        A.i('s_addc_u32 s%d, s21, 0' % (S_P + 1))
        A.i('s_and_b32 s%d, s%d, 0xffff' % (S_P + 1, S_P + 1))
        A.i('s_mov_b32 s%d, %d' % (S_P + 2, wpb))
        A.i('s_mov_b32 s%d, 0x20000' % (S_P + 3))
    CHL = 12 if gu else 10
    mulc, sh = (171, 11) if gu else (205, 11)
    NI = NWI // 2
    for inst in range(NI):
        A.i('v_add_u32 v%d, %d, v0' % (t0, 64 * inst))
        A.i('v_mul_u32_u24 v%d, %d, v%d' % (t1, mulc, t0))
        A.i('v_lshrrev_b32 v%d, %d, v%d' % (t1, sh, t1))
        A.i('v_mul_u32_u24 v%d, %d, v%d' % (t2, CHL, t1))
        A.i('v_sub_u32 v%d, v%d, v%d' % (t0, t0, t2))
        A.i('v_and_b32 v%d, 4, v%d' % (t3, t1))
        if gu:
            A.i('v_lshrrev_b32 v%d, 1, v%d' % (t2, t3))
            A.i('v_xor_b32 v%d, v%d, v%d' % (t0, t0, t2))
        A.i('v_and_b32 v%d, 0x13, v%d' % (t2, t1))
        A.i('v_lshl_or_b32 v%d, v%d, 1, v%d' % (t2, t3, t2))
        A.i('v_and_b32 v%d, 8, v%d' % (t3, t1))
        A.i('v_lshrrev_b32 v%d, 1, v%d' % (t3, t3))
        A.i('v_or_b32 v%d, v%d, v%d' % (t2, t2, t3))
        A.i('v_mul_u32_u24 v%d, %d, v%d' % (t2, rowbytes, t2))
        A.i('v_add_u32 v%d, s%d, v%d' % (t2, S_T0, t2))
        A.i('v_lshl_add_u32 v%d, v%d, 4, v%d' % (16 + inst, t0, t2))
    A.i('s_mul_i32 s%d, s%d, %d' % (S_KW, S_OFF, 64 * rowbytes))
    A.i('s_mul_i32 s%d, s%d, %d' % (S_WN, S_WM, NI * 1024))
    A.i('s_add_u32 s%d, s%d, %d' % (S_WN, S_WN, WRING))

    def issue_w():
        A.i('s_add_u32 m0, s%d, s%d' % (S_WR, S_WN))
        for j in range(NI):
            A.i('buffer_load_dwordx4 v%d, s[%d:%d], s%d offen lds' % (16 + j, S_WT, S_WT + 3, S_KW))
            if j < NI - 1:
                A.i('s_add_u32 m0, m0, 1024')
        A.i('s_add_u32 s%d, s%d, %d' % (S_KW, S_KW, 32 * rowbytes))
        A.i('s_cmp_eq_u32 s%d, %d' % (S_KW, 640 * rowbytes))
        A.i('s_cselect_b32 s%d, 0, s%d' % (S_KW, S_KW))
        A.i('s_add_u32 s%d, s%d, %d' % (S_WR, S_WR, BUFSZ))
        A.i('s_cmp_eq_u32 s%d, %d' % (S_WR, NBUF * BUFSZ))
        A.i('s_cselect_b32 s%d, 0, s%d' % (S_WR, S_WR))
    issue_w()
    if not gu:
        A.i('v_lshlrev_b32 v%d, 4, v0' % t0)
        A.i('s_lshl_b32 s%d, s%d, 12' % (S_T1, S_WM))
        A.i('s_add_u32 m0, s%d, %d' % (S_T1, WPHI))
        for j in range(4):
            A.i('buffer_load_dwordx4 v%d, s[%d:%d], s%d offen lds' % (t0, S_P, S_P + 3, S_T1))
            A.i('s_add_u32 m0, m0, 1024')
            A.i('s_add_u32 s%d, s%d, 1024' % (S_T1, S_T1))
    n = NI
    if os.environ.get('THR', '1') == '1':
        issue_w()
        if not kv:
            k1_repack_setup(A)
        A.i('s_waitcnt vmcnt(%d)' % n)
        A.i('s_barrier')
        issue_w(); issue_w()
    else:
        for i in range(3):
            issue_w()
        A.i('s_waitcnt vmcnt(%d)' % (3 * n))
        A.i('s_barrier')
    A.raw('L_k1_ldw_loop_%s:' % role)
    A.i('s_waitcnt vmcnt(%d)' % (2 * n))
    A.i('s_barrier')
    issue_w()
    A.i('s_add_u32 s%d, s%d, 1' % (S_CNT, S_CNT))
    A.i('s_cmp_lt_u32 s%d, 16' % S_CNT)
    A.i('s_cbranch_scc1 L_k1_ldw_loop_%s' % role)
    A.i('s_waitcnt vmcnt(%d)' % (2 * n))
    A.i('s_barrier')
    if not kv:
        A.i('s_branch L_k1_rp')
    else:
        A.i('s_waitcnt vmcnt(%d)' % n)
        A.i('s_barrier')
        A.i('s_waitcnt vmcnt(0)')
        A.i('s_barrier')
        A.i('s_barrier')
        A.i('s_endpgm')


RP_VD, RP_VO, RP_VO4, RP_VTR, RP_VST, RP_GXO, RP_GSO, RP_GWO, RP_FR, RP_GX, RP_GWR, RP_GA = 32, 37, 42, 47, 48, 49, 50, 51, 52, 72, 92, 112
RP_VT4 = 31
S_RPW, S_RPD, S_RPS, S_RPT, S_RPG, S_RPL, S_RPF = 76, 77, 78, 79, 80, 81, 82
S_WD, S_WOO, S_WFO = 84, 88, 92


def k1_repack_setup(A):
    t0, t1, t2, t3, t4, t5 = 14, 15, 1, 2, 3, 4
    VD, VO, VO4 = RP_VD, RP_VO, RP_VO4
    srd(A, S_WD, 30, 31, 1728 * 1280)
    srd(A, S_WOO, 22, 23, 640 * 1280)
    srd(A, S_WFO, 38, 39, WF_BYTES, WS_WF)
    srd(A, S_GW, 32, 33, 1280)
    srd(A, S_G, 38, 39, 8192, WS_G)
    srd(A, S_FL, 38, 39, FL_BYTES, WS_FL)
    for inst in range(5):
        A.i('v_add_u32 v%d, %d, v0' % (t1, 64 * inst))
        A.i('v_mul_u32_u24 v%d, 205, v%d' % (t0, t1))
        A.i('v_lshrrev_b32 v%d, 11, v%d' % (t0, t0))
        A.i('v_mul_u32_u24 v%d, 10, v%d' % (t2, t0))
        A.i('v_sub_u32 v%d, v%d, v%d' % (t1, t1, t2))
        A.i('v_lshlrev_b32 v%d, 4, v%d' % (t1, t1))
        A.i('v_and_b32 v%d, 7, v%d' % (t2, t0))
        A.i('v_and_b32 v%d, 8, v%d' % (t3, t0))
        A.i('v_lshl_or_b32 v%d, v%d, 1, v%d' % (t2, t3, t2))
        A.i('v_and_b32 v%d, 16, v%d' % (t3, t0))
        A.i('v_lshrrev_b32 v%d, 1, v%d' % (t3, t3))
        A.i('v_or_b32 v%d, v%d, v%d' % (t2, t2, t3))
        A.i('v_mul_u32_u24 v%d, 1280, v%d' % (t2, t2))
        A.i('v_add_u32 v%d, v%d, v%d' % (VD + inst, t2, t1))
        A.i('v_bfe_u32 v%d, v%d, 3, 1' % (t3, t0))
        A.i('v_and_b32 v%d, 3, v%d' % (t4, t0))
        A.i('v_lshl_add_u32 v%d, v%d, 2, v%d' % (t3, t3, t4))
        A.i('v_mul_u32_u24 v%d, 20, v%d' % (t3, t3))
        A.i('v_lshrrev_b32 v%d, 4, v%d' % (t4, t0))
        A.i('v_bfe_u32 v%d, v%d, 2, 1' % (t5, t0))
        A.i('v_lshl_add_u32 v%d, v%d, 1, v%d' % (t4, t4, t5))
        A.i('v_bfe_u32 v%d, v%d, 3, 1' % (t5, t0))
        A.i('v_mul_u32_u24 v%d, 20, v%d' % (t5, t5))
        A.i('v_lshl_add_u32 v%d, v%d, 2, v%d' % (t5, t4, t5))
        A.i('v_and_b32 v%d, 3, v%d' % (t2, t0))
        A.i('v_add_u32 v%d, v%d, v%d' % (t5, t5, t2))
        A.i('v_add3_u32 v%d, v%d, v%d, 16' % (t4, t4, t3))
        A.i('v_mul_u32_u24 v%d, 1280, v%d' % (t5, t5))
        A.i('v_mul_u32_u24 v%d, 1280, v%d' % (t4, t4))
        A.i('v_add_u32 v%d, v%d, v%d' % (VO + inst, t5, t1))
        A.i('v_add_u32 v%d, v%d, v%d' % (VO4 + inst, t4, t1))
    A.i('s_and_b32 s%d, s%d, 3' % (S_RPL, S_W))
    A.i('s_mul_i32 s%d, s%d, 5120' % (S_RPL, S_RPL))
    A.i('s_add_u32 s%d, s%d, %d' % (S_RPL, S_RPL, XBUF))
    A.i('v_lshrrev_b32 v%d, 1, v%d' % (t0, V_G))
    A.i('v_lshlrev_b32 v%d, 4, v%d' % (t0, t0))
    A.i('v_and_b32 v%d, 1, v%d' % (t1, V_G))
    A.i('v_lshl_add_u32 v%d, v%d, 2, v%d' % (t0, t1, t0))
    A.i('v_add_u32 v%d, v%d, v%d' % (t0, t0, V_R))
    A.i('v_mul_u32_u24 v%d, 160, v%d' % (t0, t0))
    A.i('v_add_u32 v%d, s%d, v%d' % (t0, S_RPL, t0))
    A.i('v_lshl_add_u32 v%d, v%d, 4, v%d' % (RP_VTR, V_C, t0))
    A.i('v_lshl_add_u32 v%d, v%d, 3, v%d' % (RP_VT4, V_C, t0))
    A.i('v_lshlrev_b32 v%d, 4, v0' % RP_VST)
    A.i('v_lshlrev_b32 v%d, 4, v%d' % (RP_GWO, V_L))
    A.i('v_mul_u32_u24 v%d, 1280, v%d' % (RP_GXO, V_G))
    A.i('v_add_u32 v%d, v%d, v%d' % (RP_GXO, RP_GXO, RP_GWO))
    A.i('v_lshlrev_b32 v%d, 2, v%d' % (t2, V_G))
    A.i('v_mov_b32 v%d, 0x%x' % (t3, BIG))
    A.i('v_cmp_eq_u32 vcc, 0, v%d' % V_L)
    A.i('v_cndmask_b32 v%d, v%d, v%d, vcc' % (RP_GSO, t3, t2))
    for k in range(4):
        A.i('v_mov_b32 v%d, 0' % (RP_GA + k))
    A.i('s_lshl_b32 s%d, s%d, 2' % (S_RPW, S_IDX))
    A.i('s_add_u32 s%d, s%d, s%d' % (S_RPW, S_RPW, S_W))
    A.i('s_sub_u32 s%d, s%d, %d' % (S_RPW, S_RPW, 64 * 4 + 8))
    A.i('s_lshl_b32 s%d, s%d, 10' % (S_RPF, S_RPW))
    A.i('s_cmp_lt_u32 s%d, 512' % S_RPW)
    A.i('s_cselect_b32 s%d, s%d, 0x20000' % (S_RPG, S_RPW))
    A.i('s_and_b32 s%d, s%d, 7' % (S_T0, S_RPW))
    A.i('s_lshr_b32 s%d, s%d, 3' % (S_T1, S_RPW))
    A.i('s_mul_i32 s%d, s%d, 74' % (S_RPD, S_T0))
    A.i('s_add_u32 s%d, s%d, s%d' % (S_RPD, S_RPD, S_T1))
    A.i('s_mul_i32 s%d, s%d, 5120' % (S_RPD, S_RPD))
    A.i('s_mul_i32 s%d, s%d, 160' % (S_T0, S_T0))
    A.i('s_mul_i32 s%d, s%d, 40960' % (S_RPS, S_T1))
    A.i('s_add_u32 s%d, s%d, s%d' % (S_RPS, S_RPS, S_T0))
    A.i('s_mov_b32 s%d, 0' % S_RPT)
    A.i('s_cmp_lt_u32 s%d, 54' % S_T1)
    A.i('s_cbranch_scc1 L_rps_done_%d' % A.count)
    lab = 'L_rps_done_%d' % (A.count - 1)
    A.i('s_sub_u32 s%d, s%d, 54' % (S_T1, S_T1))
    A.i('s_mul_i32 s%d, s%d, 52' % (S_T2, S_T1))
    A.i('s_lshr_b32 s%d, s%d, 8' % (S_T2, S_T2))
    A.i('s_mul_i32 s%d, s%d, 5' % (S_RPS, S_T2))
    A.i('s_sub_u32 s%d, s%d, s%d' % (S_T1, S_T1, S_RPS))
    A.i('s_mul_i32 s%d, s%d, %d' % (S_RPS, S_T2, 160 * 1280))
    A.i('s_add_u32 s%d, s%d, s%d' % (S_RPS, S_RPS, S_T0))
    A.i('s_mul_i32 s%d, s%d, %d' % (S_T2, S_T1, 40 * 1280))
    A.i('s_cmp_eq_u32 s%d, 4' % S_T1)
    A.i('s_cselect_b32 s%d, 0, s%d' % (S_T2, S_T2))
    A.i('s_cselect_b32 s%d, 2, 1' % S_RPT)
    A.i('s_add_u32 s%d, s%d, s%d' % (S_RPS, S_RPS, S_T2))
    A.raw(lab + ':')
    A.i('s_cmp_lt_u32 s%d, 592' % S_RPW)
    A.i('s_cselect_b32 s%d, s%d, 0x%x' % (S_RPS, S_RPS, BIG))
    A.i('s_cselect_b32 s%d, s%d, 0x%x' % (S_RPD, S_RPD, BIG))


def k1_repack(A):
    A.label('L_k1_rp')
    A.hist = []; A.vmq = []; A.lgq = []
    FR, GX, GWR, GA = RP_FR, RP_GX, RP_GWR, RP_GA
    for i in range(5):
        A.i('buffer_load_dwordx4 %s, v%d, s[%d:%d], 0 offen offset:%d' % (vr(GWR + 4 * i, 4), RP_GWO, S_GW, S_GW + 3, 256 * i))
    A.i('s_mul_i32 s%d, s%d, 5120' % (S_T0, S_RPG))
    for i in range(5):
        A.i('buffer_load_dwordx4 %s, v%d, s[%d:%d], s%d offen offset:%d' % (vr(GX + 4 * i, 4), RP_GXO, S_X, S_X + 3, S_T0, 256 * i))
    A.i('buffer_store_dwordx4 %s, v%d, s[%d:%d], s%d offen' % (vr(GA, 4), RP_VST, S_FL, S_FL + 3, S_RPF))
    A.i('s_mov_b32 m0, s%d' % S_RPL)
    A.i('s_cmp_eq_u32 s%d, 1' % S_RPT)
    A.i('s_cbranch_scc1 L_k1_rp_wo')
    A.i('s_cmp_eq_u32 s%d, 2' % S_RPT)
    A.i('s_cbranch_scc1 L_k1_rp_wo4')

    def dmas(v, sreg):
        for inst in range(5):
            A.i('buffer_load_dwordx4 v%d, s[%d:%d], s%d offen lds' % (v + inst, sreg, sreg + 3, S_RPS))
            if inst < 4:
                A.i('s_add_u32 m0, m0, 1024')
    dmas(RP_VD, S_WD)
    A.i('s_branch L_k1_rp_go')
    A.raw('L_k1_rp_wo:')
    A.hist = []
    dmas(RP_VO, S_WOO)
    A.i('s_branch L_k1_rp_go')
    A.raw('L_k1_rp_wo4:')
    A.hist = []
    dmas(RP_VO4, S_WOO)
    A.raw('L_k1_rp_go:')
    A.hist = []
    A.i('s_waitcnt vmcnt(16)')
    A.i('s_barrier')
    A.i('s_barrier')
    A.i('s_barrier')
    A.i('s_setprio 0')
    A.i('s_waitcnt vmcnt(0)')
    for t in range(5):
        for jh in range(2):
            if t < 4:
                A.i('ds_read_b64_tr_b16 %s, v%d offset:%d' % (vr(FR + 4 * t + 2 * jh, 2), RP_VTR, 8 * jh * 160 + 64 * (t >> 1) + 8 * (t & 1)))
            else:
                A.i('ds_read_b64_tr_b16 %s, v%d offset:%d' % (vr(FR + 4 * t + 2 * jh, 2), RP_VT4, 8 * jh * 160 + 128))
    A.i('s_mov_b32 s%d, 0x%08x' % (S_CL2E, f32bits(LOG2E)))
    for i in range(20):
        A.i('v_dot2_f32_bf16 v%d, v%d, v%d, v%d' % (GA + (i & 1), GX + i, GWR + i, GA + (i & 1)))
    A.i('s_waitcnt lgkmcnt(0)')
    for t in range(4):
        A.i('buffer_store_dwordx4 %s, v%d, s[%d:%d], s%d offen offset:%d' % (vr(FR + 4 * t, 4), RP_VST, S_WFO, S_WFO + 3, S_RPD, 1024 * t) + SC)
    A.i('s_add_u32 s%d, s%d, 4096' % (S_RPD, S_RPD))
    A.i('buffer_store_dwordx4 %s, v%d, s[%d:%d], s%d offen' % (vr(FR + 16, 4), RP_VST, S_WFO, S_WFO + 3, S_RPD) + SC)
    A.i('v_add_f32 v%d, v%d, v%d' % (GA, GA, GA + 1))
    for m in ('quad_perm:[1,0,3,2]', 'quad_perm:[2,3,0,1]', 'row_half_mirror', 'row_mirror'):
        A.i('v_add_f32_dpp v%d, v%d, v%d %s row_mask:0xf bank_mask:0xf' % (GA, GA, GA, m))
    A.i('v_mul_f32 v%d, s%d, v%d' % (GA, S_CL2E, GA))
    A.i('v_exp_f32 v%d, -v%d' % (GA, GA))
    A.i('v_add_f32 v%d, 1.0, v%d' % (GA, GA))
    A.i('v_rcp_f32 v%d, v%d' % (GA, GA))
    A.i('s_lshl_b32 s%d, s%d, 4' % (S_T0, S_RPG))
    A.i('buffer_store_dword v%d, v%d, s[%d:%d], s%d offen' % (GA, RP_GSO, S_G, S_G + 3, S_T0))
    A.i('s_endpgm')


def wp_read(A, idx, WPR):
    kap, tp = idx // 5, idx % 5
    rb_ = WPR + tp * 4
    for jh in range(2):
        off = (8 * kap + 4 * jh) * 40 + 8 * tp
        if kap == 2 and jh == 1:
            continue
        A.i('ds_read_b64_tr_b16 %s, v%d offset:%d' % (vr(rb_ + 2 * jh, 2), V_T, off), tag=('wp', idx))


def phi_compact(A, ACC, n):
    for st in range(n):
        T, B = ACC + 20 * st, ACC + 12 * st
        for k in range(10):
            A.i('v_cvt_pk_bf16_f32 v%d, v%d, v%d' % (B + k, T + 2 * k, T + 2 * k + 1))
    for st in range(n):
        B = ACC + 12 * st
        A.i('v_mov_b32 v%d, 0' % (B + 10))
        A.i('v_mov_b32 v%d, 0' % (B + 11))


def phi_mfma_ops(A, BF, WPR, P, more):
    ops = []
    for idx in range(15):
        def f(idx=idx):
            kap, tp = idx // 5, idx % 5
            A.wait_lg(('wp', idx))
            c = '0' if kap == 0 else vr(P + 4 * tp, 4)
            A.i('v_mfma_f32_16x16x32_bf16 %s, %s, %s, %s' % (vr(P + 4 * tp, 4), vr(WPR + tp * 4, 4), vr(BF + 4 * kap, 4), c))
            if idx + 5 < 15:
                wp_read(A, idx + 5, WPR)
            elif more:
                wp_read(A, idx - 10, WPR)
        ops.append(f)
    return ops


def phi_softmax_ops(P, E, OUT):
    L = []
    mx, mn, s0, s2 = E + 20, E + 22, E + 24, E + 21
    t1 = E + 23
    L.append('v_max3_f32 v%d, v%d, v%d, v%d' % (mx, P, P + 1, P + 2))
    L.append('v_min3_f32 v%d, v%d, v%d, v%d' % (mn, P, P + 1, P + 2))
    L.append('v_max3_f32 v%d, v%d, v%d, v%d' % (s2, P + 3, P + 4, P + 5))
    L.append('v_min3_f32 v%d, v%d, v%d, v%d' % (t1, P + 3, P + 4, P + 5))
    for k in range(6, 20, 4):
        L.append('v_max3_f32 v%d, v%d, v%d, v%d' % (mx, mx, P + k, P + k + 1))
        L.append('v_min3_f32 v%d, v%d, v%d, v%d' % (mn, mn, P + k, P + k + 1))
        if k + 3 < 20:
            L.append('v_max3_f32 v%d, v%d, v%d, v%d' % (s2, s2, P + k + 2, P + k + 3))
            L.append('v_min3_f32 v%d, v%d, v%d, v%d' % (t1, t1, P + k + 2, P + k + 3))
    L.append('v_max_f32 v%d, v%d, v%d' % (mx, mx, s2))
    L.append('v_min_f32 v%d, v%d, v%d' % (mn, mn, t1))
    L.append('v_mul_f32 v%d, s%d, v%d' % (mx, S_CL2E, mx))
    L.append('v_mul_f32 v%d, s%d, v%d' % (mn, S_CL2E, mn))
    sc = 's[%d:%d]' % (S_CL2E, S_CL2E + 1)
    for sign in range(2):
        for k in range(0, 20, 2):
            if sign == 0:
                L.append('v_pk_fma_f32 %s, %s, %s, %s op_sel_hi:[1,0,0] neg_lo:[0,0,1] neg_hi:[0,0,1]' % (
                    vr(E + k, 2), vr(P + k, 2), sc, vr(mx, 2)))
            else:
                L.append('v_pk_fma_f32 %s, %s, %s, %s op_sel_hi:[1,0,0] neg_lo:[1,0,0] neg_hi:[1,0,0]' % (
                    vr(E + k, 2), vr(P + k, 2), sc, vr(mn, 2)))
        for k in range(20):
            L.append('v_exp_f32 v%d, v%d' % (E + k, E + k))
            if k == 4:
                L.append('v_pk_add_f32 %s, %s, %s' % (vr(s0, 2), vr(E, 2), vr(E + 2, 2)))
            elif k > 4 and k % 2 == 0:
                L.append('v_pk_add_f32 %s, %s, %s' % (vr(s0, 2), vr(s0, 2), vr(E + k - 2, 2)))
        L.append('v_pk_add_f32 %s, %s, %s' % (vr(s0, 2), vr(s0, 2), vr(E + 18, 2)))
        L.append('v_add_f32 v%d, v%d, v%d' % (s0, s0, s0 + 1))
        L.append('v_rcp_f32 v%d, v%d' % (s0, s0))
        for k in range(0, 20, 2):
            L.append('v_pk_mul_f32 %s, %s, %s op_sel_hi:[1,0]' % (vr(E + k, 2), vr(E + k, 2), vr(s0, 2)))
        for k in range(10):
            L.append('v_cvt_pk_bf16_f32 v%d, v%d, v%d' % (OUT[sign * 10 + k], E + 2 * k, E + 2 * k + 1))
    return L


def phi_pipeline(A, ACC, n, WPR, E, emit_out):
    PB = [116, ACC + 48]
    XO = ACC + 68
    for f in phi_mfma_ops(A, ACC, WPR, PB[0], n > 1):
        f()
    for st in range(n):
        if st < 2:
            A.stamp(10 + st)
        B = ACC + 12 * st
        chunks = [B, B + 4, B + 8, XO, XO + 4]
        OUT = [c + k for c in chunks for k in range(4)]
        sm = phi_softmax_ops(PB[st % 2], E, OUT)
        mf = phi_mfma_ops(A, ACC + 12 * (st + 1), WPR, PB[(st + 1) % 2], st + 2 < n) if st + 1 < n else []
        gap = max(1, (len(sm) - 30) // 15)
        for k, ins in enumerate(sm):
            A.i(ins)
            if mf and k >= 4 and (k - 4) % gap == 0:
                mf.pop(0)()
        for f in mf:
            f()
        emit_out(st, chunks)


def k1_role(A, role):
    PP = role_params(role)
    gu, kv = PP['gu'], PP['kv']
    RS, cstride, tstride, SUBSZ, BUFSZ = (PP[k] for k in ('RS', 'cstride', 'tstride', 'SUBSZ', 'BUFSZ'))
    if gu:
        RS = 192
    NWB = 3 if gu else 1
    NS = 3 if role == 'q' else 4
    NT = 6 if gu else 5
    LA = 4
    RING = NT
    nb = NT - LA - 1
    if gu:
        V_XF, V_RING = 112, 144
    else:
        V_XF, V_RING = 96, 128
    XSET = NS * 4
    A.label('L_k1_' + role)
    A.dbg_slot = {'kv': 0, 'q': 1, 'gu': 2}[role]
    A.dbg_wg = {'kv': 8, 'q': 2 + 8 * 3, 'gu': 6 + 8 * 5}[role]
    A.hist = []; A.vmq = []; A.lgq = []
    A.i('s_cmp_ge_u32 s%d, 8' % S_W)
    A.i('s_cbranch_scc1 L_k1_ld_' + role)
    A.stamp(0)
    A.stamp_rt(8)
    t0, t1, t2, t3 = V_T, V_T + 1, V_XF, V_XF + 1
    PF = os.environ.get('PF', '')
    if 'x' in PF:
        A.i('s_lshr_b32 s%d, s2, 3' % S_T0)
        A.i('s_mul_i32 s%d, s%d, %d' % (S_T0, S_T0, 704 * 128))
        A.i('s_mul_i32 s%d, s%d, %d' % (S_T1, S_W, 88 * 128))
        A.i('s_add_u32 s%d, s%d, s%d' % (S_T0, S_T0, S_T1))
        A.i('v_lshlrev_b32 v%d, 7, v0' % t0)
        A.i('s_mov_b32 m0, %d' % K1_LDS)
        A.i('buffer_load_dword v%d, s[%d:%d], s%d offen lds' % (t0, S_X, S_X + 3, S_T0), tag='pf')
        A.i('s_add_u32 s%d, s%d, 8192' % (S_T0, S_T0))
        A.i('s_mov_b64 exec, 0xffffff')
        A.i('buffer_load_dword v%d, s[%d:%d], s%d offen lds' % (t0, S_X, S_X + 3, S_T0), tag='pf')
        A.i('s_mov_b64 exec, -1')
    A.i('v_lshrrev_b32 v%d, 1, v%d' % (t0, V_G))
    A.i('v_lshlrev_b32 v%d, 4, v%d' % (t0, t0))
    A.i('v_and_b32 v%d, 1, v%d' % (t2, V_G))
    A.i('v_lshl_add_u32 v%d, v%d, 2, v%d' % (t0, t2, t0))
    A.i('v_add_u32 v%d, v%d, v%d' % (t0, t0, V_R))
    A.i('v_mul_u32_u24 v%d, %d, v%d' % (t0, RS, t0))
    A.i('v_mul_u32_u24 v%d, %d, v%d' % (t1, cstride, V_C))
    if gu:
        A.i('v_add3_u32 v%d, v%d, v%d, %s' % (t0, t0, t1, '0'))
        A.i('v_add_u32 v%d, %d, v%d' % (t0, WRING, t0))
        for k in range(3):
            A.i('s_cmp_eq_u32 s%d, 0' % S_WN)
            A.i('s_cselect_b32 s%d, %d, %d' % (S_T0, k, [4, 5, 3][k]))
            A.i('v_xor_b32 v%d, s%d, v%d' % (t1, S_T0, t2))
            A.i('v_lshl_add_u32 v%d, v%d, 5, v%d' % (V_WA + k, t1, t0))
    else:
        A.i('s_mul_i32 s%d, s%d, %d' % (S_T0, S_WN, SUBSZ))
        A.i('s_add_u32 s%d, s%d, %d' % (S_T0, S_T0, WRING))
        A.i('v_add3_u32 v%d, v%d, v%d, s%d' % (V_WA, t0, t1, S_T0))
    A.i('v_lshrrev_b32 v%d, 1, v%d' % (t0, V_L))
    A.i('v_xor_b32 v%d, v%d, v%d' % (t1, t0, V_G))
    A.i('v_lshlrev_b32 v%d, 7, v%d' % (t0, V_L))
    A.i('v_lshl_add_u32 v%d, v%d, 4, v%d' % (t0, t1, t0))
    A.i('s_mul_i32 s%d, s%d, %d' % (S_T0, S_WM, NS * 2048))
    A.i('v_add_u32 v%d, s%d, v%d' % (V_XA, S_T0, t0))
    A.i('v_xor_b32 v%d, 64, v%d' % (V_XA + 1, V_XA))
    A.i('v_mov_b32 v%d, v%d' % (V_XB, V_XA))
    for k in range(NWB):
        A.i('v_mov_b32 v%d, v%d' % (V_WB + k, V_WA + k))
    A.i('s_mov_b32 s%d, %d' % (S_NXT, BUFSZ))
    A.i('s_mov_b32 s%d, 0' % S_XN)
    A.i('s_mov_b32 s%d, 0' % S_CNT)
    for k in range(NT * NS * 4):
        A.i('v_mov_b32 v%d, 0' % (V_ACC + k))
    if gu:
        srd(A, S_O, 38, 39, H_BYTES, WS_H)
    elif kv:
        srd(A, S_O, 38, 39, KVP_BYTES, WS_KVP)
    else:
        srd(A, S_O, 38, 39, PQ_BYTES, WS_PQ)
    A.stamp(1)

    def tile_off(n):
        if gu:
            return (n // 3) * 6144
        return n * tstride

    def rd_w(p, n, jh):
        rg = V_RING + (n % RING) * 4
        wb = V_WB + p * NWB + (n % 3 if gu else 0)
        A.i('ds_read_b64_tr_b16 %s, v%d offset:%d' % (vr(rg + 2 * jh, 2), wb, tile_off(n) + 8 * jh * RS),
            tag=('W', p, n))

    def rd_x(p, st):
        A.i('ds_read_b128 %s, v%d offset:%d' % (vr(V_XF + p * XSET + st * 4, 4), V_XB + p, st * 2048), tag=('X', p))

    def rd_gw(p):
        A.i('v_add_u32 v%d, s%d, v%d' % (V_WA + 1, S_KX, V_GWA))
        A.i('ds_read_b128 %s, v%d' % (vr(V_GWF + p * 4, 4), V_WA + 1), tag=('X', p))
        A.i('s_add_u32 s%d, s%d, 64' % (S_KX, S_KX))
        A.i('s_cmp_eq_u32 s%d, 1280' % S_KX)
        A.i('s_cselect_b32 s%d, 0, s%d' % (S_KX, S_KX))

    def acc(n, st):
        return V_ACC + (st * NT + n) * 4

    def stage(p):
        for n in range(NT):
            fill = []
            if n == nb:
                def bar():
                    if p == 1:
                        A.i('s_add_u32 s%d, s%d, %d' % (S_XN, S_XN, XBUF))
                        A.i('s_cmp_eq_u32 s%d, %d' % (S_XN, 3 * XBUF))
                        A.i('s_cselect_b32 s%d, 0, s%d' % (S_XN, S_XN))
                    A.i('s_barrier')
                    A.i('v_add_u32 v%d, s%d, v%d' % (V_XB + (p ^ 1), S_XN, V_XA + (p ^ 1)))
                    for k in range(NWB):
                        A.i('v_add_u32 v%d, s%d, v%d' % (V_WB + (p ^ 1) * NWB + k, S_NXT, V_WA + k))
                fill.append(bar)
                def adv():
                    A.i('s_add_u32 s%d, s%d, %d' % (S_NXT, S_NXT, BUFSZ))
                    A.i('s_cmp_eq_u32 s%d, %d' % (S_NXT, NBUF * BUFSZ))
                    A.i('s_cselect_b32 s%d, 0, s%d' % (S_NXT, S_NXT))
                fill.append(adv)
            xs = n - (nb + 1)
            if 0 <= xs < 2:
                for st in range(xs * 2, min(NS, xs * 2 + 2)):
                    fill.append(lambda st=st: rd_x(p ^ 1, st))
            for jh in range(2):
                if n + LA < NT:
                    fill.insert(jh, (lambda jh=jh, n=n: rd_w(p, n + LA, jh)))
                else:
                    fill.append(lambda jh=jh, n=n: rd_w(p ^ 1, n + LA - NT, jh))
            if n == 0:
                A.wait_lg(('X', p))
            A.wait_lg(('W', p, n))
            rg = V_RING + (n % RING) * 4
            mf = []
            for st in range(NS):
                mf.append('v_mfma_f32_16x16x32_bf16 %s, %s, %s, %s' % (vr(acc(n, st), 4), vr(rg, 4),
                                                                     vr(V_XF + p * XSET + st * 4, 4), vr(acc(n, st), 4)))
            for k, m in enumerate(mf):
                if not os.environ.get('NOMFMA'):
                    A.i(m)
                rem = len(mf) - k
                take = -(-len(fill) // rem)
                for _ in range(take):
                    fill.pop(0)()

    A.i('s_barrier')
    for st in range(NS):
        rd_x(0, st)
    for n in range(LA):
        rd_w(0, n, 0); rd_w(0, n, 1)
    A.wait_all(vm=False)
    A.stamp(2)
    saved = (A.lines, A.hist, A.vmq, A.count, A.nops)
    A.lines = []; A.hist = []
    stage(0); stage(1)
    steady = list(A.lgq)
    A.lines, A.hist, A.vmq, A.count, A.nops = saved
    A.lgq = list(steady)
    A.fence()
    A.raw('L_k1_loop_%s:' % role)
    stage(0)
    stage(1)
    assert A.lgq == steady, (A.lgq, steady)
    A.i('s_add_u32 s%d, s%d, 1' % (S_CNT, S_CNT))
    A.i('s_cmp_lt_u32 s%d, 10' % S_CNT)
    A.i('s_cbranch_scc1 L_k1_loop_%s' % role)
    A.fence()
    A.wait_all()
    A.stamp(12)

    A.i('s_mul_i32 s%d, s%d, %d' % (S_T0, S_RB, 4 * NS))
    A.i('s_mul_i32 s%d, s%d, %d' % (S_T1, S_WM, NS))
    A.i('s_add_u32 s%d, s%d, s%d' % (S_T0, S_T0, S_T1))
    if gu:
        C0 = -2.0 * math.sqrt(2.0 / math.pi) * LOG2E
        C1 = C0 * 0.044715
        vC0, vO = t0, t1
        A.i('v_mov_b32 v%d, 0x%08x' % (vC0, f32bits(C0)))
        A.i('s_mov_b32 s%d, 0x%08x' % (S_CL2E, f32bits(C1)))
        A.i('s_mul_i32 s%d, s%d, 54' % (S_T0, S_T0))
        A.i('s_mul_i32 s%d, s%d, 3' % (S_T1, S_SUB))
        A.i('s_add_u32 s%d, s%d, s%d' % (S_T0, S_T0, S_T1))
        A.i('s_lshl_b32 s%d, s%d, 10' % (S_T0, S_T0))
        A.i('s_lshl_b32 s%d, s%d, 11' % (S_T1, S_WN))
        A.i('s_add_u32 s%d, s%d, s%d' % (S_T1, S_T1, S_T0))
        A.i('s_lshl_b32 s%d, s%d, 3' % (S_T2, S_WN))
        A.i('s_add_u32 s%d, s%d, s%d' % (S_T2, S_T2, S_T0))
        A.i('s_add_u32 s%d, s%d, 1024' % (S_T2, S_T2))
        A.i('v_lshlrev_b32 v%d, 4, v0' % vO)
        for st in range(4):
            e = 112 + (st % 2) * 28
            xg, xu = acc(0, st), acc(3, st)
            sc = 's[%d:%d]' % (S_CL2E, S_CL2E + 1)
            for j in range(0, 12, 2):
                A.i('v_pk_mul_f32 %s, %s, %s' % (vr(e + j, 2), vr(xg + j, 2), vr(xg + j, 2)))
            for j in range(0, 12, 2):
                A.i('v_pk_fma_f32 %s, %s, %s, %s op_sel_hi:[1,0,0]' % (vr(e + j, 2), vr(e + j, 2), sc, vr(vC0, 2)))
            for j in range(0, 12, 2):
                A.i('v_pk_mul_f32 %s, %s, %s' % (vr(e + j, 2), vr(e + j, 2), vr(xg + j, 2)))
            for j in range(12):
                A.i('v_exp_f32 v%d, v%d' % (e + j, e + j))
                if j % 2 == 1:
                    A.i('v_pk_mul_f32 %s, %s, %s' % (vr(xg + j - 1, 2), vr(xg + j - 1, 2), vr(xu + j - 1, 2)))
            for j in range(0, 12, 2):
                A.i('v_pk_add_f32 %s, %s, 1.0 op_sel_hi:[1,0]' % (vr(e + j, 2), vr(e + j, 2)))
            for j in range(12):
                A.i('v_rcp_f32 v%d, v%d' % (e + j, e + j))
            for j in range(0, 12, 2):
                A.i('v_pk_mul_f32 %s, %s, %s' % (vr(e + j, 2), vr(e + j, 2), vr(xg + j, 2)))
            for j in range(6):
                A.i('v_cvt_pk_bf16_f32 v%d, v%d, v%d' % (e + 12 + j, e + 2 * j, e + 2 * j + 1))
            A.i('buffer_store_dwordx4 %s, v%d, s[%d:%d], s%d offen' % (vr(e + 12, 4), vO, S_O, S_O + 3, S_T1) + SC, tag='st')
            A.i('buffer_store_dwordx2 %s, v%d, s[%d:%d], s%d offen' % (vr(e + 16, 2), vO, S_O, S_O + 3, S_T2) + SC, tag='st')
            if st < 3:
                A.i('s_add_u32 s%d, s%d, %d' % (S_T1, S_T1, 54 * 1024))
                A.i('s_add_u32 s%d, s%d, %d' % (S_T2, S_T2, 54 * 1024))
        A.stamp(13)
        A.stamp_end(38, 39, WS_STAMP, S_W, 8)
        A.i('s_endpgm')
        return

    WPR, P, E, MISC = 96, 116, 136, 162
    t2, t3 = 1, 2
    A.i('s_mov_b32 s%d, 0x%08x' % (S_CL2E, f32bits(LOG2E)))
    A.i('v_mul_u32_u24 v%d, 800, v%d' % (t0, V_G))
    A.i('v_mul_u32_u24 v%d, 40, v%d' % (t1, V_R))
    if kv:
        A.i('s_mov_b32 s%d, %d' % (S_T1, WPHI))
    else:
        A.i('s_mul_i32 s%d, s%d, 3200' % (S_T1, S_WN))
        A.i('s_add_u32 s%d, s%d, %d' % (S_T1, S_T1, WPHI))
    A.i('v_add3_u32 v%d, v%d, v%d, s%d' % (t0, t0, t1, S_T1))
    A.i('v_mov_b32 v%d, %d' % (t1, WPHI + 6400))
    A.i('v_cmp_eq_u32 vcc, v%d, v%d' % (V_C, V_G))
    A.i('v_cndmask_b32 v%d, v%d, v%d, vcc' % (V_T, t1, t0))
    for idx in range(5):
        wp_read(A, idx, WPR)
    if role == 'q':
        vO = MISC
        A.i('v_mul_u32_u24 v%d, 1280, v%d' % (vO, V_G))
        A.i('v_lshl_add_u32 v%d, v%d, 4, v%d' % (vO, V_L, vO))
        A.i('s_lshl_b32 s%d, s%d, 5' % (S_T0, S_T0))
        A.i('s_lshl_b32 s%d, s%d, 3' % (S_T1, S_SUB))
        A.i('s_add_u32 s%d, s%d, s%d' % (S_T0, S_T0, S_T1))
        A.i('s_lshl_b32 s%d, s%d, 2' % (S_T1, S_WN))
        A.i('s_add_u32 s%d, s%d, s%d' % (S_T0, S_T0, S_T1))
        A.i('s_mul_i32 s%d, s%d, 1280' % (S_T0, S_T0))
        def out_q(st, chunks):
            for k in range(5):
                A.i('buffer_store_dwordx4 %s, v%d, s[%d:%d], s%d offen offset:%d' % (
                    vr(chunks[k], 4), vO, S_O, S_O + 3, S_T0, 256 * k) + SC, tag='st')
            if st < NS - 1:
                A.i('s_add_u32 s%d, s%d, %d' % (S_T0, S_T0, 32 * 1280))
        phi_compact(A, V_ACC, NS)
        phi_pipeline(A, V_ACC, NS, WPR, E, out_q)
        A.stamp(13)
        A.stamp_end(38, 39, WS_STAMP, S_W, 8)
        A.i('s_endpgm')
        return

    vA0, vA1, vB = 3, 4, 5
    tq = E
    A.i('v_lshrrev_b32 v%d, 1, v%d' % (tq, V_G))
    A.i('v_lshlrev_b32 v%d, 3, v%d' % (tq, tq))
    A.i('v_and_b32 v%d, 1, v%d' % (vA1, V_G))
    A.i('v_lshl_add_u32 v%d, v%d, 2, v%d' % (tq, vA1, tq))
    A.i('v_add_u32 v%d, v%d, v%d' % (tq, tq, V_R))
    A.i('v_lshlrev_b32 v%d, 1, v%d' % (tq, tq))
    A.i('s_and_b32 s%d, s%d, 3' % (S_NXT, S_W))
    A.i('s_lshr_b32 s%d, s%d, 2' % (S_XN, S_W))
    A.i('s_xor_b32 s%d, s%d, 1' % (S_XN, S_XN))
    A.i('s_mul_i32 s%d, s%d, 80' % (S_T2, S_NXT))
    A.i('v_mul_u32_u24 v%d, %d, v%d' % (vA0, PK_RS, tq))
    A.i('v_lshl_add_u32 v%d, v%d, 3, v%d' % (vA0, V_C, vA0))
    A.i('v_add_u32 v%d, s%d, v%d' % (vA0, S_T2, vA0))
    A.i('v_add_u32 v%d, %d, v%d' % (vA1, 128 * PK_RS, vA0))
    A.i('s_mul_i32 s%d, s%d, 40' % (S_T2, S_NXT))
    A.i('s_lshl_b32 s%d, s%d, 5' % (S_KX, S_XN))
    A.i('s_add_u32 s%d, s%d, s%d' % (S_T2, S_T2, S_KX))
    A.i('s_add_u32 s%d, s%d, %d' % (S_T2, S_T2, PV_OFF))
    A.i('v_mul_u32_u24 v%d, %d, v%d' % (vB, PV_RS, tq))
    A.i('v_lshl_add_u32 v%d, v%d, 3, v%d' % (vB, V_C, vB))
    A.i('v_add_u32 v%d, s%d, v%d' % (vB, S_T2, vB))
    va, vb, vza, vzb, vbig, vm, vj = 6, 7, 8, 9, E + 1, E + 2, E + 3
    A.i('s_lshl_b32 s%d, s%d, 5' % (S_T2, S_RB))
    A.i('s_lshl_b32 s%d, s%d, 2' % (S_KX, S_SUB))
    A.i('s_add_u32 s%d, s%d, s%d' % (S_T2, S_T2, S_KX))
    A.i('s_add_u32 s%d, s%d, s%d' % (S_T2, S_T2, S_NXT))
    A.i('s_mul_i32 s%d, s%d, 5120' % (S_WR, S_T2))
    A.i('v_mov_b32 v%d, 0x%x' % (vbig, BIG))
    A.i('s_lshl_b32 s%d, s%d, 1' % (S_KX, S_XN))
    A.i('v_lshlrev_b32 v%d, s%d, v%d' % (vm, S_KX, V_L))
    A.i('v_and_b32 v%d, 1, v%d' % (vj, V_G))
    A.i('v_lshlrev_b32 v%d, 2, v%d' % (vj, vj))
    A.i('v_lshrrev_b32 v%d, 1, v%d' % (tq, V_G))
    A.i('v_lshl_add_u32 v%d, v%d, 7, v%d' % (tq, tq, vj))
    A.i('s_lshl_b32 s%d, s%d, 9' % (S_KX, S_XN))
    A.i('v_lshl_add_u32 v%d, v%d, 3, v%d' % (va, vm, tq))
    A.i('v_add_u32 v%d, s%d, v%d' % (va, S_KX, va))
    A.i('v_lshlrev_b32 v%d, 2, v%d' % (va, va))
    A.i('s_lshl_b32 s%d, s%d, 7' % (S_KX, S_XN))
    A.i('s_add_u32 s%d, s%d, 1024' % (S_KX, S_KX))
    A.i('v_lshl_add_u32 v%d, v%d, 3, v%d' % (vb, vm, vj))
    A.i('v_add_u32 v%d, s%d, v%d' % (vb, S_KX, vb))
    A.i('v_lshlrev_b32 v%d, 2, v%d' % (vb, vb))
    A.i('v_cmp_gt_u32 vcc, 16, v%d' % vm)
    A.i('v_cndmask_b32 v%d, v%d, v%d, vcc' % (va, vbig, va))
    A.i('v_cndmask_b32 v%d, v%d, v%d, vcc' % (vb, vbig, vb))
    A.i('v_cmp_gt_u32 vcc, 2, v%d' % V_G)
    A.i('v_cndmask_b32 v%d, v%d, v%d, vcc' % (vb, vbig, vb))
    A.i('v_lshl_add_u32 v%d, v%d, 3, v%d' % (vza, V_L, tq))
    A.i('v_add_u32 v%d, 512, v%d' % (vza, vza))
    A.i('v_lshlrev_b32 v%d, 2, v%d' % (vza, vza))
    A.i('v_lshl_add_u32 v%d, v%d, 3, v%d' % (vzb, V_L, vj))
    A.i('v_add_u32 v%d, 1152, v%d' % (vzb, vzb))
    A.i('v_lshlrev_b32 v%d, 2, v%d' % (vzb, vzb))
    A.i('v_cndmask_b32 v%d, v%d, v%d, vcc' % (vzb, vbig, vzb))
    A.i('v_cmp_eq_u32 vcc, 1, v%d' % V_C)
    A.i('v_cndmask_b32 v%d, v%d, v%d, vcc' % (vza, vbig, vza))
    A.i('v_cndmask_b32 v%d, v%d, v%d, vcc' % (vzb, vbig, vzb))
    A.stamp(3)
    A.i('s_barrier')
    A.stamp(4)
    vP, vH = MISC + 3, MISC + 4
    A.i('s_lshl_b32 s%d, s%d, 6' % (S_T0, S_WM))
    A.i('v_add_u32 v%d, s%d, v%d' % (t1, S_T0, V_L))
    A.i('s_mul_i32 s%d, s%d, 5120' % (S_T0, S_WM))
    A.i('s_add_u32 s%d, s%d, %d' % (S_T0, S_T0, HO_OFF))
    A.i('v_lshlrev_b32 v%d, 4, v0' % vH)
    A.i('v_add_u32 v%d, s%d, v%d' % (vH, S_T0, vH))
    A.fence()
    A.i('s_cmp_eq_u32 s%d, 0' % S_WN)
    A.i('s_cbranch_scc1 L_k1_kv_k')
    A.i('v_mul_u32_u24 v%d, %d, v%d' % (vP, PV_RS, t1))
    A.i('v_mul_u32_u24 v%d, 40, v%d' % (t2, V_G))
    A.i('v_add3_u32 v%d, v%d, v%d, %s' % (vP, vP, t2, '0'))
    A.i('v_add_u32 v%d, %d, v%d' % (vP, PV_OFF, vP))
    for st in range(4):
        a = acc(0, st)
        for k in range(10):
            A.i('v_cvt_pk_bf16_f32 v%d, v%d, v%d' % (a + k, a + 2 * k, a + 2 * k + 1))
        for t in range(5):
            A.i('ds_write_b64 v%d, %s offset:%d' % (vP, vr(a + 2 * t, 2), st * 16 * PV_RS + 8 * t), tag='lw')
    A.i('v_add_u32 v%d, 32, v%d' % (t1, t1))
    A.i('s_barrier')
    for k in range(5):
        A.i('ds_read_b128 %s, v%d offset:%d' % (vr(V_ACC + 24 + 4 * k, 4), vH, 1024 * k), tag='ho')
    A.wait_lg('ho')
    for k in range(10):
        A.i('v_mov_b32 v%d, v%d' % (V_ACC + k, V_ACC + 24 + k))
        A.i('v_mov_b32 v%d, v%d' % (V_ACC + 12 + k, V_ACC + 34 + k))
    for k in (10, 11, 22, 23):
        A.i('v_mov_b32 v%d, 0' % (V_ACC + k))
    A.i('s_branch L_k1_kv_sm')
    A.raw('L_k1_kv_k:')
    A.hist = []
    for st in range(2):
        T, B = V_ACC + 20 * st, V_ACC + 12 * st
        for k in range(10):
            A.i('v_cvt_pk_bf16_f32 v%d, v%d, v%d' % (B + k, T + 2 * k, T + 2 * k + 1))
    for k in range(20):
        A.i('v_cvt_pk_bf16_f32 v%d, v%d, v%d' % (V_ACC + 40 + k, V_ACC + 40 + 2 * k, V_ACC + 41 + 2 * k))
    for k in range(5):
        A.i('ds_write_b128 v%d, %s offset:%d' % (vH, vr(V_ACC + 40 + 4 * k, 4), 1024 * k), tag='lw')
    for k in (10, 11, 22, 23):
        A.i('v_mov_b32 v%d, 0' % (V_ACC + k))
    A.wait_all(vm=False)
    A.i('s_barrier')
    A.raw('L_k1_kv_sm:')
    A.hist = []
    A.lgq = []
    A.stamp(5)
    A.i('v_mul_u32_u24 v%d, %d, v%d' % (vP, PK_RS, t1))
    A.i('v_mul_u32_u24 v%d, 80, v%d' % (t2, V_G))
    A.i('v_add_u32 v%d, v%d, v%d' % (vP, vP, t2))

    def out_k(st, chunks):
        for k in range(5):
            A.i('ds_write_b128 v%d, %s offset:%d' % (vP, vr(chunks[k], 4), st * 16 * PK_RS + 16 * k), tag='lw')
    phi_pipeline(A, V_ACC, 2, WPR, E, out_k)
    A.wait_all(vm=False)
    A.stamp(6)
    A.i('s_barrier')
    A.stamp(7)
    ONES, DK, DZ, FR = 16, 20, 32, 44
    for k in range(4):
        A.i('v_mov_b32 v%d, 0x3f803f80' % (ONES + k))

    def kv_reads(kk):
        f = FR + (kk % 6) * 16
        for mt in range(3):
            for jh in range(2):
                A.i('ds_read_b64_tr_b16 %s, v%d offset:%d' % (
                    vr(f + 4 * mt + 2 * jh, 2), vA0 if kk < 4 else vA1,
                    (32 * (kk % 4) + jh) * PK_RS + 32 * mt), tag=('kf', kk))
        for jh in range(2):
            A.i('ds_read_b64_tr_b16 %s, v%d offset:%d' % (vr(f + 12 + 2 * jh, 2), vB, (32 * kk + jh) * PV_RS),
                tag=('kf', kk))

    def kv_mfma(k2, withz):
        A.wait_lg(('kf', k2))
        f2 = FR + (k2 % 6) * 16
        for mt in range(3):
            c = '0' if k2 == 0 else vr(DK + 4 * mt, 4)
            A.i('v_mfma_f32_16x16x32_bf16 %s, %s, %s, %s' % (vr(DK + 4 * mt, 4), vr(f2 + 4 * mt, 4), vr(f2 + 12, 4), c))
            if withz:
                c = '0' if k2 == 0 else vr(DZ + 4 * mt, 4)
                A.i('v_mfma_f32_16x16x32_bf16 %s, %s, %s, %s' % (vr(DZ + 4 * mt, 4), vr(f2 + 4 * mt, 4), vr(ONES, 4), c))

    for kk in range(4):
        kv_reads(kk)
    A.i('s_cmp_eq_u32 s%d, 1' % S_XN)
    A.fence()
    A.i('s_cbranch_scc1 L_k1_kv_z')
    q0 = (list(A.lgq), list(A.vmq))
    for withz in (False, True):
        if withz:
            A.raw('L_k1_kv_z:')
            A.hist = []
            A.lgq, A.vmq = list(q0[0]), list(q0[1])
        for kk in range(8):
            if kk + 4 < 8:
                kv_reads(kk + 4)
            kv_mfma(kk, withz)
        for mt in range(3):
            A.i('buffer_store_dwordx4 %s, v%d, s[%d:%d], s%d offen offset:%d' % (
                vr(DK + 4 * mt, 4), va if mt < 2 else vb, S_O, S_O + 3, S_WR, 1024 * mt if mt < 2 else 0), tag='st')
            if withz:
                A.i('buffer_store_dwordx4 %s, v%d, s[%d:%d], s%d offen offset:%d' % (
                    vr(DZ + 4 * mt, 4), vza if mt < 2 else vzb, S_O, S_O + 3, S_WR, 1024 * mt if mt < 2 else 0), tag='st')
        A.stamp(13)
        A.stamp_end(38, 39, WS_STAMP, S_W, 8)
        A.i('s_endpgm')


def k1(A):
    A.raw('.globl k1_kernel\n.p2align 8\n.type k1_kernel,@function\nk1_kernel:')
    A.i('s_cmp_ge_u32 s2, 256')
    A.i('s_cbranch_scc1 L_k1_exit')
    A.i('s_load_dwordx16 s[16:31], s[0:1], 0')
    A.i('s_load_dwordx8 s[32:39], s[0:1], 64')
    A.i('s_and_b32 s%d, s2, 1' % S_C)
    A.i('s_bfe_u32 s%d, s2, 0x20001' % S_T0)
    A.i('s_lshr_b32 s%d, s2, 3' % S_T1)
    A.i('s_lshl_b32 s%d, s%d, 5' % (S_T0, S_T0))
    A.i('s_add_u32 s%d, s%d, s%d' % (S_T0, S_T0, S_T1))
    A.i('s_lshl_b32 s%d, s%d, 2' % (S_T1, S_C))
    A.i('s_sub_u32 s%d, 56, s%d' % (S_T2, S_T1))
    A.i('s_sub_u32 s%d, s%d, s%d' % (S_OFF, S_T0, S_T2))
    A.i('s_cmp_lt_u32 s%d, 32' % S_T0)
    A.i('s_cselect_b32 s%d, s%d, s%d' % (S_OFF, S_T0, S_OFF))
    A.i('s_lshr_b32 s%d, s%d, 2' % (S_SUB, S_OFF))
    A.i('s_and_b32 s%d, s%d, 3' % (S_RB, S_OFF))
    A.i('s_add_u32 s%d, s%d, s%d' % (S_RB, S_RB, S_T1))
    A.i('s_mov_b32 s%d, 2' % S_XN)
    A.i('s_cmp_lt_u32 s%d, s%d' % (S_T0, S_T2))
    A.i('s_cselect_b32 s%d, 1, s%d' % (S_XN, S_XN))
    A.i('s_cmp_lt_u32 s%d, 32' % S_T0)
    A.i('s_cselect_b32 s%d, 0, s%d' % (S_XN, S_XN))
    A.i('s_cmp_eq_u32 s%d, 2' % S_XN)
    A.i('s_cselect_b32 s%d, s%d, 0' % (S_T1, S_SUB))
    A.i('s_cmp_ge_u32 s%d, 18' % S_T1)
    A.i('s_cbranch_scc1 L_k1_exit')
    A.i('s_sub_u32 s%d, s%d, 32' % (S_T1, S_T0))
    A.i('s_cmp_eq_u32 s%d, 0' % S_C)
    A.i('s_cselect_b32 s%d, 43, 52' % S_T2)
    A.i('s_mul_i32 s%d, s%d, s%d' % (S_T2, S_T1, S_T2))
    A.i('s_lshr_b32 s%d, s%d, 8' % (S_T2, S_T2))
    A.i('s_sub_u32 s%d, 6, s%d' % (S_NXT, S_C))
    A.i('s_mul_i32 s%d, s%d, s%d' % (S_NXT, S_NXT, S_T2))
    A.i('s_sub_u32 s%d, s%d, s%d' % (S_NXT, S_T1, S_NXT))
    A.i('s_mul_i32 s%d, s%d, 6' % (S_WR, S_C))
    A.i('s_add_u32 s%d, s%d, s%d' % (S_NXT, S_NXT, S_WR))
    A.i('s_cmp_eq_u32 s%d, 1' % S_XN)
    A.i('s_cselect_b32 s%d, s%d, s%d' % (S_SUB, S_T2, S_SUB))
    A.i('s_cselect_b32 s%d, s%d, s%d' % (S_RB, S_NXT, S_RB))
    A.i('s_mul_i32 s%d, s%d, 96' % (S_IDX, S_C))
    A.i('s_add_u32 s%d, s%d, s%d' % (S_IDX, S_IDX, S_T0))
    A.i('s_add_u32 s%d, s%d, 32' % (S_IDX, S_IDX))
    A.i('s_mov_b32 s%d, s%d' % (S_C, S_XN))
    ra, rc = [int(v) for v in os.environ.get('ROT', '3,3').split(',')]
    A.i('s_lshr_b32 s%d, s%d, 2' % (S_OFF, S_T0))
    A.i('s_mul_i32 s%d, s%d, %d' % (S_OFF, S_OFF, rc))
    A.i('s_mul_i32 s%d, s%d, %d' % (S_T2, S_RB, ra))
    A.i('s_add_u32 s%d, s%d, s%d' % (S_OFF, S_OFF, S_T2))
    A.i('s_mul_i32 s%d, s%d, 205' % (S_T2, S_OFF))
    A.i('s_lshr_b32 s%d, s%d, 11' % (S_T2, S_T2))
    A.i('s_mul_i32 s%d, s%d, 10' % (S_T2, S_T2))
    A.i('s_sub_u32 s%d, s%d, s%d' % (S_OFF, S_OFF, S_T2))
    A.i('v_lshrrev_b32 v1, 6, v0')
    A.i('v_readfirstlane_b32 s%d, v1' % S_W)
    A.i('v_and_b32 v0, 63, v0')
    A.i('v_and_b32 v%d, 15, v0' % V_L)
    A.i('v_lshrrev_b32 v%d, 4, v0' % V_G)
    A.i('v_bfe_u32 v%d, v0, 2, 2' % V_R)
    A.i('v_and_b32 v%d, 3, v0' % V_C)
    A.i('s_and_b32 s%d, s%d, 3' % (S_WM, S_W))
    A.i('s_lshr_b32 s%d, s%d, 2' % (S_WN, S_W))
    A.i('s_waitcnt lgkmcnt(0)')
    srd(A, S_X, 16, 17, 2048 * 1280)
    A.fence()
    A.i('s_cmp_eq_u32 s%d, 0' % S_C)
    A.i('s_cbranch_scc1 L_k1_kv')
    A.i('s_cmp_eq_u32 s%d, 1' % S_C)
    A.i('s_cbranch_scc1 L_k1_q')
    for role in ('gu', 'q', 'kv'):
        k1_role(A, role)
        k1_loader(A, role)
    k1_repack(A)
    A.raw('L_k1_exit:')
    A.i('s_endpgm')


def kd(name, vgpr, accum, sgpr=102):
    return '''.amdhsa_kernel %s
  .amdhsa_next_free_vgpr %d
  .amdhsa_next_free_sgpr %d
  .amdhsa_accum_offset %d
  .amdhsa_group_segment_fixed_size 0
  .amdhsa_kernarg_size 96
  .amdhsa_user_sgpr_count 2
  .amdhsa_user_sgpr_kernarg_segment_ptr 1
  .amdhsa_system_sgpr_workgroup_id_x 1
.end_amdhsa_kernel
''' % (name, vgpr, sgpr, accum)


if __name__ == '__main__':
    out = sys.argv[1] if len(sys.argv) > 1 else 'k.s'
    only1 = len(sys.argv) > 2 and sys.argv[2] == 'k1'
    A = Asm()
    st = os.environ.get('STAMP', '')
    A.dbg_mode = bool(os.environ.get('DBG'))
    if '1' in st:
        A.stamp_on = True
        A.stamp_v = 19
        A.stamp_s = 76
    A.raw('; @launch kernel=k1_kernel grid=(256,1,1) block=(768,1,1) lds=%d' % (K1_LDS + 1024))
    if not only1:
        from gen2 import k2, K2_LDS, K2_VGPR, K2_ACC
        K2_THREADS = 256
        A.raw('; @launch kernel=k2_kernel grid=(256,1,1) block=(%d,1,1) lds=%d' % (K2_THREADS, K2_LDS))
    A.raw('.amdgcn_target "amdgcn-amd-amdhsa--gfx950"\n.text')
    k1(A)
    if not only1:
        A.hist = []; A.vmq = []; A.lgq = []
        A.stamp_on = '2' in st
        A.stamp_v = 255
        A.stamp_s = None
        k2(A)
    A.raw('.section .rodata,"a"\n.p2align 6')
    A.raw(kd('k1_kernel', K1_VGPR, K1_VGPR))
    if not only1:
        A.raw('.p2align 6')
        A.raw(kd('k2_kernel', K2_VGPR, K2_ACC))
    open(out, 'w').write(A.text())
    print('instrs', A.count, 'nops', A.nops)
```

```python
import re

TRANS = {'v_exp_f32', 'v_log_f32', 'v_rcp_f32', 'v_rsq_f32', 'v_sqrt_f32', 'v_sin_f32', 'v_cos_f32',
         'v_rcp_iflag_f32'}

_reg_re = re.compile(r'^(-|abs\()?\|?([vas])(\d+)\)?\|?$')
_rng_re = re.compile(r'^(-)?([vas])\[(\d+):(\d+)\]$')


def regs_of(op):
    op = op.strip()
    m = _rng_re.match(op)
    if m:
        return [(m.group(2), i) for i in range(int(m.group(3)), int(m.group(4)) + 1)]
    m = _reg_re.match(op)
    if m:
        return [(m.group(2), int(m.group(3)))]
    if op in ('vcc', 'exec', 'm0', 'scc'):
        return [(op, 0)]
    if op in ('vcc_lo', 'vcc_hi'):
        return [('vcc', 0)]
    return []


def split_ops(s):
    out, depth, cur = [], 0, ''
    for ch in s:
        if ch == '[' or ch == '(':
            depth += 1
        elif ch == ']' or ch == ')':
            depth -= 1
        if ch == ',' and depth == 0:
            out.append(cur.strip())
            cur = ''
        else:
            cur += ch
    if cur.strip():
        out.append(cur.strip())
    return out


class Ins:
    __slots__ = ('mn', 'cls', 'w', 'r', 'srcc', 'states', 'text', 'wide_store_data', 'lds_dma', 'dpp', 'ab')


def classify(text):
    t = text.split(';')[0].strip()
    parts = t.split(None, 1)
    mn = parts[0]
    rest = parts[1] if len(parts) > 1 else ''
    ops_raw = split_ops(rest)
    mods = []
    if ops_raw:
        last = ops_raw[-1].split()
        ops_raw[-1] = last[0]
        mods = last[1:]
    I = Ins()
    I.mn = mn
    I.text = text
    I.states = 1
    I.srcc = []
    I.ab = []
    I.wide_store_data = []
    I.lds_dma = False
    I.dpp = any(m.startswith(('quad_perm', 'row_', 'wave_')) for m in mods) or mn.endswith('_dpp')
    w, r = [], []
    if mn == 's_nop':
        I.cls = 'nop'
        I.states = int(ops_raw[0], 0) + 1
    elif mn.startswith('v_mfma'):
        I.cls = 'mfma'
        w = regs_of(ops_raw[0])
        I.ab = regs_of(ops_raw[1]) + regs_of(ops_raw[2])
        I.srcc = regs_of(ops_raw[3])
        r = I.ab + I.srcc
    elif mn.startswith('v_'):
        I.cls = 'valu'
        if mn.startswith('v_cmp'):
            w = regs_of(ops_raw[0])
            for o in ops_raw[1:]:
                r += regs_of(o)
        elif mn in ('v_add_co_u32', 'v_addc_co_u32', 'v_sub_co_u32', 'v_subb_co_u32', 'v_mad_u64_u32'):
            w = regs_of(ops_raw[0]) + regs_of(ops_raw[1])
            for o in ops_raw[2:]:
                r += regs_of(o)
        elif mn.startswith('v_permlane') and 'swap' in mn:
            w = regs_of(ops_raw[0]) + regs_of(ops_raw[1])
            r = list(w)
        else:
            w = regs_of(ops_raw[0])
            for o in ops_raw[1:]:
                r += regs_of(o)
            if mn.startswith(('v_fmac', 'v_pk_fmac', 'v_dot2c', 'v_writelane')):
                r += w
            if mn == 'v_cndmask_b32' and len(ops_raw) == 3:
                r += [('vcc', 0)]
    elif mn.startswith(('buffer_inv', 'buffer_wbl2')):
        I.cls = 'vmem'
    elif mn.startswith(('buffer_load', 'global_load')):
        if 'lds' in mods or mn.startswith('global_load_lds'):
            I.cls = 'vmem'
            I.lds_dma = True
            for o in ops_raw:
                r += regs_of(o)
            r += [('m0', 0)]
        else:
            I.cls = 'vmem'
            w = regs_of(ops_raw[0])
            for o in ops_raw[1:]:
                r += regs_of(o)
    elif mn.startswith(('buffer_store', 'global_store', 'buffer_atomic', 'global_atomic')):
        I.cls = 'vmem'
        for o in ops_raw:
            r += regs_of(o)
        if mn.endswith(('x3', 'x4')):
            di = 0 if mn.startswith('buffer') else 1
            I.wide_store_data = regs_of(ops_raw[di])
        if 'atomic' in mn and 'sc0' in mods:
            w = regs_of(ops_raw[0])
    elif mn.startswith('ds_read') or mn.startswith('ds_bpermute') or mn.startswith('ds_permute') or mn.startswith('ds_swizzle'):
        I.cls = 'ds'
        w = regs_of(ops_raw[0])
        for o in ops_raw[1:]:
            r += regs_of(o)
    elif mn.startswith('ds_'):
        I.cls = 'ds'
        for o in ops_raw:
            r += regs_of(o)
    elif mn.startswith(('s_load', 's_buffer_load', 's_memtime', 's_memrealtime')):
        I.cls = 'smem'
        w = regs_of(ops_raw[0])
        for o in ops_raw[1:]:
            r += regs_of(o)
    elif mn.startswith('s_'):
        I.cls = 'salu'
        if mn.startswith(('s_cmp', 's_waitcnt', 's_barrier', 's_branch', 's_cbranch', 's_endpgm', 's_sleep',
                          's_setprio', 's_bitcmp')):
            for o in ops_raw:
                r += regs_of(o)
        else:
            w = regs_of(ops_raw[0])
            for o in ops_raw[1:]:
                r += regs_of(o)
    else:
        raise ValueError('unknown instr: ' + text)
    I.w = set(w)
    I.r = set(r)
    I.srcc = set(I.srcc)
    I.ab = set(I.ab)
    I.wide_store_data = set(I.wide_store_data)
    return I


def need_states(P, C):
    n = 0
    vw = {x for x in P.w if x[0] in 'va'}
    sw = {x for x in P.w if x[0] == 's' or x[0] == 'vcc'}
    if P.cls == 'valu':
        if C.cls == 'mfma' and (vw & C.r):
            n = max(n, 2)
        if P.mn in TRANS and C.cls == 'valu' and C.mn not in TRANS and (vw & C.r):
            n = max(n, 1)
        if P.mn in TRANS and C.cls in ('vmem', 'ds') and (vw & C.r):
            n = max(n, 1)
        if sw:
            if C.cls == 'valu' and (sw & C.r):
                n = max(n, 4 if C.mn.startswith(('v_readlane', 'v_writelane')) else 2)
            if C.cls == 'vmem' and (sw & C.r):
                n = max(n, 5)
            if C.cls in ('salu', 'smem') and (sw & C.r):
                n = max(n, 1)
        if C.cls == 'valu' and C.mn.startswith(('v_readfirstlane', 'v_readlane')) and (vw & C.r):
            n = max(n, 1)
        if C.cls == 'valu' and (C.dpp or C.mn.startswith('v_permlane')) and (vw & C.r):
            n = max(n, 2)
    if P.cls == 'mfma':
        passes8 = '32x32' in P.mn
        if C.cls == 'mfma':
            if vw & C.ab:
                n = max(n, 12 if passes8 else 8)
            if vw & C.srcc:
                if P.w == C.srcc and P.mn == C.mn:
                    pass
                else:
                    n = max(n, 10 if passes8 else 6)
            elif vw & C.w:
                n = max(n, 10 if passes8 else 6)
        elif C.cls in ('valu', 'vmem', 'ds'):
            if vw & (C.r | C.w):
                n = max(n, 12 if passes8 else 8)
            if C.cls == 'valu' and (P.srcc & C.w):
                n = max(n, 7 if passes8 else 3)
    if P.cls == 'salu' and ('m0', 0) in P.w and C.lds_dma:
        n = max(n, 1)
    if P.wide_store_data and (P.wide_store_data & C.w):
        n = max(n, 2)
    return n


class Asm:
    def __init__(self):
        self.lines = []
        self.hist = []
        self.vmq = []
        self.lgq = []
        self.nops = 0
        self.count = 0

    def raw(self, text):
        self.lines.append(text)

    def comment(self, text):
        self.lines.append('    ; ' + text)

    def label(self, name):
        self.lines.append(name + ':')

    def fence(self):
        self.i('s_nop 7')
        self.i('s_nop 3')
        self.hist = []

    def i(self, text, tag=None):
        I = classify(text)
        dist = 0
        need = 0
        for P in reversed(self.hist):
            n = need_states(P, I)
            if n > dist:
                need = max(need, n - dist)
            dist += P.states
            if dist >= 20:
                break
        while need > 0:
            k = min(need, 16)
            N = classify('s_nop %d' % (k - 1))
            self.lines.append('    s_nop %d' % (k - 1))
            self.hist.append(N)
            self.nops += 1
            need -= k
        self.lines.append('    ' + text)
        self.hist.append(I)
        if len(self.hist) > 64:
            self.hist = self.hist[-32:]
        self.count += 1
        if I.cls == 'vmem':
            self.vmq.append(tag)
        elif I.cls == 'ds':
            self.lgq.append(tag)
        return I

    def wait_vm(self, tag):
        tags = tag if isinstance(tag, (list, set)) else [tag]
        idx = -1
        for k, t in enumerate(self.vmq):
            if t in tags:
                idx = k
        if idx < 0:
            return
        n = len(self.vmq) - 1 - idx
        if n > 63:
            n = 63
            idx = len(self.vmq) - 1 - 63
        self.i('s_waitcnt vmcnt(%d)' % n)
        self.vmq = self.vmq[idx + 1:]

    def wait_lg(self, tag):
        tags = tag if isinstance(tag, (list, set)) else [tag]
        idx = -1
        for k, t in enumerate(self.lgq):
            if t in tags:
                idx = k
        if idx < 0:
            return
        n = len(self.lgq) - 1 - idx
        if n > 15:
            n = 15
            idx = len(self.lgq) - 1 - 15
        self.i('s_waitcnt lgkmcnt(%d)' % n)
        self.lgq = self.lgq[idx + 1:]

    def wait_all(self, vm=True, lg=True):
        s = []
        if vm:
            s.append('vmcnt(0)')
            self.vmq = []
        if lg:
            s.append('lgkmcnt(0)')
            self.lgq = []
        self.i('s_waitcnt ' + ' '.join(s))

    stamp_on = False
    stamp_v = 255
    stamp_s = None
    stamp_n = 0
    def stamp(self, k):
        if not self.stamp_on:
            return
        self.i('s_memtime s[96:97]')
        self.i('s_waitcnt lgkmcnt(0)')
        self.lgq = []
        if self.stamp_s is not None:
            self.i('s_mov_b32 s%d, s96' % (self.stamp_s + k))
            self.stamp_n = max(self.stamp_n, k + 1)
        else:
            self.i('v_writelane_b32 v%d, s96, %d' % (self.stamp_v, k))

    def stamp_rt(self, k):
        if not self.stamp_on:
            return
        self.i('s_memrealtime s[96:97]')
        self.i('s_waitcnt lgkmcnt(0)')
        self.lgq = []
        if self.stamp_s is not None:
            self.i('s_mov_b32 s%d, s96' % (self.stamp_s + k))
            self.stamp_n = max(self.stamp_n, k + 1)
        else:
            self.i('v_writelane_b32 v%d, s96, %d' % (self.stamp_v, k))

    def stamp_end(self, ws_lo, ws_hi, off, s_w, nw):
        if not self.stamp_on:
            return
        self.wait_all()
        self.stamp(14)
        self.stamp_rt(9)
        self.stamp_dump(ws_lo, ws_hi, off, s_w, nw)

    dbg_mode = False
    def stamp_dump(self, ws_lo, ws_hi, off, s_w, nw):
        if not self.stamp_on:
            return
        if self.dbg_mode:
            self.i('s_mov_b32 s92, s36')
            self.i('s_and_b32 s93, s37, 0xffff')
            self.i('s_mov_b32 s94, 64')
            self.i('s_mov_b32 s95, 0x20000')
            b = self.stamp_s
            self.i('s_sub_u32 s96, s%d, s%d' % (b + 2, b)); self.i('v_writelane_b32 v%d, s96, 0' % self.stamp_v)
            self.i('s_sub_u32 s96, s%d, s%d' % (b + 12, b)); self.i('v_writelane_b32 v%d, s96, 1' % self.stamp_v)
            self.i('s_sub_u32 s96, s%d, s%d' % (b + 14, b)); self.i('v_writelane_b32 v%d, s96, 2' % self.stamp_v)
            self.i('s_sub_u32 s96, s%d, s%d' % (b + 9, b + 8)); self.i('v_writelane_b32 v%d, s96, 3' % self.stamp_v)
            self.i('v_lshlrev_b32 v1, 2, v0')
            self.i('v_mov_b32 v2, 0x1000')
            self.i('v_cmp_gt_u32 vcc, 4, v0')
            self.i('v_cndmask_b32 v1, v2, v1, vcc')
            self.i('s_cmp_eq_u32 s2, %d' % self.dbg_wg)
            self.i('s_cselect_b32 s96, %d, 0x1000' % (16 * self.dbg_slot))
            self.i('s_cmp_eq_u32 s%d, 7' % s_w)
            self.i('s_cselect_b32 s96, s96, 0x1000')
            self.i('buffer_store_dword v%d, v1, s[92:95], s96 offen' % self.stamp_v)
            return
        self.i('s_add_u32 s92, s%d, 0x%x' % (ws_lo, off))
        self.i('s_addc_u32 s93, s%d, 0' % ws_hi)
        self.i('s_and_b32 s93, s93, 0xffff')
        self.i('s_mov_b32 s94, 0x100000')
        self.i('s_mov_b32 s95, 0x20000')
        self.i('s_mul_i32 s96, s2, %d' % nw)
        self.i('s_add_u32 s96, s96, s%d' % s_w)
        self.i('s_lshl_b32 s96, s96, 8')
        self.i('v_lshlrev_b32 v1, 2, v0')
        if self.stamp_s is not None:
            for k in range(self.stamp_n):
                self.i('v_writelane_b32 v%d, s%d, %d' % (self.stamp_v, self.stamp_s + k, k))
        self.i('buffer_store_dword v%d, v1, s[92:95], s96 offen' % self.stamp_v)

    def text(self):
        return '\n'.join(self.lines) + '\n'


def vr(b, n=None):
    if n is None or n == 1:
        return 'v%d' % b
    return 'v[%d:%d]' % (b, b + n - 1)


def ar(b, n=None):
    if n is None or n == 1:
        return 'a%d' % b
    return 'a[%d:%d]' % (b, b + n - 1)


def sr(b, n=None):
    if n is None or n == 1:
        return 's%d' % b
    return 's[%d:%d]' % (b, b + n - 1)
```

```python
import sys, math, os
sys.path.insert(0, 'dev')
from asmlib import *
from gen import (srd, f32bits, WS_H, WS_PQ, WS_KVP, WS_KVF, WS_FL, WS_G, WS_WF, WS_STAMP, H_BYTES, PQ_BYTES, KVP_BYTES,
                 KVF_BYTES, WF_BYTES, BIG)

RSF = 336
K2_LDS = 60 * 1024
K2_ACC = 256
K2_VGPR = 512

S_RB, S_CB, S_W = 4, 5, 6
S_H, S_PQ, S_KVP, S_KVF, S_FL, S_G, S_WF, S_OUT = 40, 44, 48, 52, 56, 60, 64, 72
S_A0, S_SA, S_SW, S_T0, S_T1, S_T2, S_T3, S_PSEL, S_CNT, S_HB, S_PQB, S_HB0, S_WB0 = 76, 77, 78, 80, 81, 82, 83, 84, 85, 86, 87, 88, 89

V_L, V_G, V_R, V_C = 1, 2, 3, 4
V_A = 5
V_PQ0 = 10
V_PQ1 = 14
V_L16 = 18
V_L16B = 19
V_KV2 = 20
V_P16, V_P8 = 21, 22
V_GT = 28
V_T = 32
V_ACC = 40
V_OOP = 120
V_D = 200
V_SV = 232
V_FLG = 252

A_R = 0
A_HD = 144


def chunk_decode(A, inst, vpos, vch, tmp):
    A.i('v_add_u32 v%d, %d, v0' % (vch, 64 * inst))
    A.i('v_mul_u32_u24 v%d, 205, v%d' % (vpos, vch))
    A.i('v_lshrrev_b32 v%d, 11, v%d' % (vpos, vpos))
    A.i('v_mul_u32_u24 v%d, 10, v%d' % (tmp, vpos))
    A.i('v_sub_u32 v%d, v%d, v%d' % (vch, vch, tmp))


def producer_loads(A, sidx, ssel, base, tag):
    A.i('s_mul_i32 s%d, s%d, 640' % (S_T0, sidx))
    A.i('s_add_u32 s%d, s%d, s%d' % (S_T0, S_T0, ssel))
    for rb in range(8):
        A.i('buffer_load_dwordx4 %s, v%d, s[%d:%d], s%d offen' % (vr(base + 4 * rb, 4), V_P16, S_KVP, S_KVP + 3, S_T0),
            tag=tag)
        if rb < 7:
            A.i('s_add_u32 s%d, s%d, %d' % (S_T0, S_T0, 32 * 5120))


def producer_store(A, sidx, ssel, base, tag):
    for step in (16, 8, 4):
        for k in range(step):
            A.i('v_add_f32 v%d, v%d, v%d' % (base + k, base + k, base + step + k))
    A.i('v_cvt_pk_bf16_f32 v%d, v%d, v%d' % (base, base, base + 1))
    A.i('v_cvt_pk_bf16_f32 v%d, v%d, v%d' % (base + 1, base + 2, base + 3))
    A.i('s_mul_i32 s%d, s%d, 320' % (S_T0, sidx))
    A.i('s_add_u32 s%d, s%d, s%d' % (S_T0, S_T0, ssel))
    A.i('buffer_store_dwordx2 %s, v%d, s[%d:%d], s%d offen sc1' % (vr(base, 2), V_P8, S_KVF, S_KVF + 3, S_T0), tag=tag)


def k2(A):
    A.raw('.globl k2_kernel\n.p2align 8\n.type k2_kernel,@function\nk2_kernel:')
    A.i('s_cmp_ge_u32 s2, 256')
    A.i('s_cbranch_scc1 L_k2_exit')
    A.i('s_load_dwordx8 s[32:39], s[0:1], 64')
    A.i('s_and_b32 s3, s2, 7')
    A.i('s_lshr_b32 s7, s2, 3')
    A.i('s_lshl_b32 s3, s3, 2')
    A.i('s_lshr_b32 s%d, s7, 3' % S_RB)
    A.i('s_add_u32 s%d, s%d, s3' % (S_RB, S_RB))
    A.i('s_and_b32 s%d, s7, 7' % S_CB)
    A.i('v_lshrrev_b32 v1, 6, v0')
    A.i('v_readfirstlane_b32 s%d, v1' % S_W)
    A.i('v_and_b32 v0, 63, v0')
    A.i('v_and_b32 v%d, 15, v0' % V_L)
    A.i('v_lshrrev_b32 v%d, 4, v0' % V_G)
    t0, t1, t2, t3 = V_T, V_T + 1, V_T + 2, V_T + 3
    A.i('v_lshlrev_b32 v%d, 4, v0' % V_L16)
    A.i('v_add_u32 v%d, 4096, v%d' % (V_L16B, V_L16))
    for st in range(4):
        A.i('v_add_u32 v%d, %d, v%d' % (V_A + st, st * 54 * 1024, V_L16))
    A.i('s_mul_i32 s%d, s%d, 14' % (S_A0, S_W))
    A.i('s_cmp_eq_u32 s%d, 3' % S_W)
    A.i('s_cselect_b32 s%d, 1, 0' % S_T0)
    A.i('s_sub_u32 s%d, s%d, s%d' % (S_A0, S_A0, S_T0))
    A.i('s_mul_i32 s%d, s%d, 216' % (S_HB0, S_RB))
    A.i('s_add_u32 s%d, s%d, s%d' % (S_HB0, S_HB0, S_A0))
    A.i('s_lshl_b32 s%d, s%d, 10' % (S_HB0, S_HB0))
    A.i('s_mul_i32 s%d, s%d, 74' % (S_WB0, S_CB))
    A.i('s_add_u32 s%d, s%d, s%d' % (S_T0, S_WB0, S_A0))
    A.i('s_mul_i32 s%d, s%d, 5120' % (S_SW, S_T0))
    A.i('s_mov_b32 s%d, s%d' % (S_SA, S_HB0))
    A.i('s_waitcnt lgkmcnt(0)')
    srd(A, S_WF, 38, 39, WF_BYTES, WS_WF)
    srd(A, S_H, 38, 39, H_BYTES, WS_H)
    A.stamp(0)
    A.stamp_rt(8)
    if os.environ.get('DBG2'):
        A.i('s_memrealtime s[100:101]')
        A.i('s_waitcnt lgkmcnt(0)')

    def ld_w(n, soff):
        b = A_R + (n % 4) * 36
        for t in range(5):
            A.i('buffer_load_dwordx4 %s, v%d, s[%d:%d], s%d offen offset:%d' % (
                ar(b + 4 * t, 4), V_L16 if t < 4 else V_L16B, S_WF, S_WF + 3, soff, 1024 * t if t < 4 else 0), tag=('w', n))

    def L_H(n):
        if n == 13:
            A.i('s_cmp_ge_u32 s%d, 2' % S_W)
            A.i('s_cselect_b32 s%d, 0x%x, s%d' % (S_SA, BIG, S_SA))
            A.i('s_cselect_b32 s%d, 0x%x, s%d' % (S_SW, BIG, S_SW))
        ld_w(n, S_SW)
        b = A_R + (n % 4) * 36 + 20
        for st in range(4):
            A.i('buffer_load_dwordx4 %s, v%d, s[%d:%d], s%d offen' % (ar(b + st * 4, 4), V_A + st, S_H, S_H + 3, S_SA),
                tag=('w', n))
        if n < 13:
            A.i('s_add_u32 s%d, s%d, 1024' % (S_SA, S_SA))
            A.i('s_add_u32 s%d, s%d, 5120' % (S_SW, S_SW))

    L_H(0)
    L_H(1)
    A.i('v_bfe_u32 v%d, v0, 2, 2' % V_R)
    A.i('v_and_b32 v%d, 3, v0' % V_C)
    srd(A, S_PQ, 38, 39, PQ_BYTES, WS_PQ)
    srd(A, S_KVP, 38, 39, KVP_BYTES, WS_KVP)
    srd(A, S_KVF, 38, 39, KVF_BYTES, WS_KVF)
    srd(A, S_FL, 38, 39, 1024, WS_FL)
    srd(A, S_G, 38, 39, 8192, WS_G)
    srd(A, S_OUT, 34, 35, 2048 * 1280)
    A.i('v_mov_b32 v%d, 0x%x' % (t2, BIG))
    A.i('v_cmp_gt_u32 vcc, 40, v0')
    A.i('v_lshlrev_b32 v%d, 3, v0' % t1)
    A.i('v_cndmask_b32 v%d, v%d, v%d, vcc' % (V_P16, t2, V_L16))
    A.i('v_cndmask_b32 v%d, v%d, v%d, vcc' % (V_P8, t2, t1))
    A.i('s_cmp_eq_u32 s%d, 0' % S_W)
    A.i('s_cselect_b32 s%d, 0, 0x%x' % (S_PSEL, BIG))
    producer_loads(A, 2, S_PSEL, V_D, 'pl')
    L_H(2)
    A.i('v_lshlrev_b32 v%d, 4, v%d' % (V_KV2, V_L))
    A.i('v_mul_u32_u24 v%d, %d, v%d' % (t0, 32 * 1280, V_G))
    A.i('v_add3_u32 v%d, v%d, v%d, %s' % (V_PQ1, t0, V_KV2, '0'))
    A.i('v_add_u32 v%d, 1024, v%d' % (V_PQ1, V_PQ1))
    for st in range(4):
        A.i('v_add_u32 v%d, %d, v%d' % (V_PQ0 + st, st * 32 * 1280, V_L16))
    for st, (lo, hi) in enumerate([(0xffff, 0), (0xffff0000, 0), (0, 0xffff), (0, 0xffff0000)]):
        A.i('s_mov_b32 s%d, 0x%x' % (8 + 2 * st, lo))
        A.i('s_mov_b32 s%d, 0x%x' % (9 + 2 * st, hi))
    A.i('s_lshl_b32 s%d, s%d, 7' % (S_PQB, S_RB))
    A.i('s_lshl_b32 s%d, s%d, 3' % (S_T0, S_W))
    A.i('s_add_u32 s%d, s%d, s%d' % (S_PQB, S_PQB, S_T0))
    A.i('s_mul_i32 s%d, s%d, 1280' % (S_PQB, S_PQB))
    A.i('s_mul_i32 s%d, s%d, %d' % (S_HB, S_W, 8 * 2560))
    A.i('s_lshl_b32 s%d, s%d, 8' % (S_T0, S_RB))
    A.i('v_lshlrev_b32 v%d, 2, v%d' % (t3, V_L))
    for st in range(4):
        A.i('buffer_load_dword v%d, v%d, s[%d:%d], s%d offen offset:%d' % (V_GT + st, t3, S_G, S_G + 3, S_T0, 64 * st), tag='g')

    def hslot(j):
        return [144, 176, 208, 0][j % 4]

    def L_Opq(j):
        b = hslot(j)
        A.i('s_add_u32 s%d, s%d, %d' % (S_T1, S_PQB, j * 1280))
        for st in range(4):
            A.i('buffer_load_dwordx4 %s, v%d, s[%d:%d], s%d offen' % (
                ar(b + st * 4, 4), V_PQ0 + st, S_PQ, S_PQ + 3, S_T1), tag=('o', j))
        A.i('buffer_load_dwordx4 %s, v%d, s[%d:%d], s%d offen' % (
            vr(V_OOP + 64 + (j % 4) * 4, 4), V_PQ1, S_PQ, S_PQ + 3, S_T1), tag=('o', j))

    def L_Okv(j):
        b = hslot(j) + 16
        A.i('s_add_u32 s%d, s%d, %d' % (S_T0, S_HB, j * 2560))
        for k in range(4):
            A.i('buffer_load_dwordx4 %s, v%d, s[%d:%d], s%d offen offset:%d%s' % (
                ar(b + 4 * k, 4), V_L16 if k < 2 else V_KV2, S_KVF, S_KVF + 3, S_T0, [0, 1024, 2048, 2304][k],
                '' if os.environ.get('KVPLAIN') else ' sc1'), tag=('o', j))

    def L_W(e):
        A.i('s_mul_i32 s%d, s%d, 5' % (S_T0, S_W))
        A.i('s_add_u32 s%d, s%d, s%d' % (S_T0, S_T0, S_WB0))
        A.i('s_add_u32 s%d, s%d, %d' % (S_T0, S_T0, 54 + e))
        A.i('s_mul_i32 s%d, s%d, 5120' % (S_T0, S_T0))
        b = wslot(e)
        for t in range(5):
            A.i('buffer_load_dwordx4 %s, v%d, s[%d:%d], s%d offen offset:%d' % (
                ar(b + 4 * t, 4), V_L16 if t < 4 else V_L16B, S_WF, S_WF + 3, S_T0, 1024 * t if t < 4 else 0), tag=('wo', e))

    def wslot(e):
        return [32, 52, 72, 92, 112][e]

    def acc(st, t):
        return V_ACC + (st * 5 + t) * 4

    def C_G(wbase, bsrc, first):
        for t in range(5):
            for st in range(4):
                c = '0' if first else vr(acc(st, t), 4)
                A.i('v_mfma_f32_16x16x32_bf16 %s, %s, %s, %s' % (vr(acc(st, t), 4), ar(wbase + 4 * t, 4), bsrc(st), c))

    for n in range(14):
        if n + 3 <= 13:
            L_H(n + 3)
        if n == 1:
            A.wait_vm('pl')
            producer_store(A, 2, S_PSEL, V_D, 'ps')
        if n == 3:
            A.wait_vm(('w', 5))
            A.i('v_mov_b32 v%d, 0x%x' % (t0, BIG))
            A.i('v_cmp_eq_u32 vcc, 0, v0')
            A.i('v_cndmask_b32 v%d, v%d, v0, vcc' % (t0, t0))
            A.i('v_mov_b32 v%d, 1' % t1)
            A.i('s_lshl_b32 s%d, s2, 2' % S_T0)
            A.i('s_add_u32 s%d, s%d, s%d' % (S_T0, S_T0, S_PSEL))
            if not os.environ.get('NOPUB'):
                A.i('buffer_store_dword v%d, v%d, s[%d:%d], s%d offen sc1' % (t1, t0, S_FL, S_FL + 3, S_T0), tag='fs')
        if n == 9:
            A.i('v_lshlrev_b32 v%d, 2, v0' % t2)
            A.i('s_lshl_b32 s%d, s%d, 8' % (S_T3, S_W))
            A.i('buffer_load_dword v%d, v%d, s[%d:%d], s%d offen sc1' % (V_FLG, t2, S_FL, S_FL + 3, S_T3), tag='fl')
        if n == 11:
            L_Opq(0)
            A.wait_vm('fl')
            A.i('v_cmp_ne_u32 vcc, 0, v%d' % V_FLG)
            A.fence()
            A.i('s_cmp_eq_u64 vcc, exec')
            A.i('s_cbranch_scc1 L_k2_ready')
            A.i('s_mov_b32 s%d, 0' % S_CNT)
            A.raw('L_k2_poll:')
            A.i('s_sleep 8')
            A.i('buffer_load_dword v%d, v%d, s[%d:%d], s%d offen sc1' % (V_FLG, t2, S_FL, S_FL + 3, S_T3), tag='fl')
            A.i('s_waitcnt vmcnt(0)')
            A.i('v_cmp_ne_u32 vcc, 0, v%d' % V_FLG)
            A.fence()
            A.i('s_cmp_eq_u64 vcc, exec')
            A.i('s_cbranch_scc1 L_k2_ready')
            A.i('s_add_u32 s%d, s%d, 1' % (S_CNT, S_CNT))
            A.i('s_cmp_lt_u32 s%d, %d' % (S_CNT, int(os.environ.get('SPIN', 2000))))
            A.i('s_cbranch_scc1 L_k2_poll')
            A.i('s_lshl_b32 s%d, s%d, 6' % (S_CNT, S_W))
            A.i('s_add_u32 s%d, s%d, 64' % (S_T2, S_CNT))
            A.i('s_mov_b32 s%d, 0' % S_T1)
            A.raw('L_k2_self:')
            producer_loads(A, S_CNT, S_T1, V_D, 'pl')
            A.i('s_waitcnt vmcnt(0)')
            producer_store(A, S_CNT, S_T1, V_D, 'ps')
            A.i('s_waitcnt vmcnt(0)')
            A.fence()
            A.i('s_add_u32 s%d, s%d, 1' % (S_CNT, S_CNT))
            A.i('s_cmp_lt_u32 s%d, s%d' % (S_CNT, S_T2))
            A.i('s_cbranch_scc1 L_k2_self')
            A.raw('L_k2_ready:')
            A.vmq = [t for t in A.vmq if t not in ('fl', 'pl', 'ps')]
            A.hist = []
            if os.environ.get('KVPLAIN') == '2':
                A.i('buffer_inv sc1')
            L_Okv(0)
        if n in (12, 13):
            L_Opq(n - 11); L_Okv(n - 11)
        A.wait_vm(('w', n))
        b = A_R + (n % 4) * 36
        C_G(b, lambda st: ar(b + 20 + st * 4, 4), n == 0)
        if n in (0, 5, 10):
            A.stamp(1 + n // 5)
    A.stamp(4)
    L_Opq(3); L_Okv(3)
    L_W(0)
    A.wait_vm('g')
    OP = V_OOP
    O4 = V_OOP + 32
    for j in range(8):
        b = hslot(j)
        p = j // 2
        A.wait_vm(('o', j))
        if j in (0, 1, 3, 5):
            A.stamp({0: 13, 1: 10, 3: 11, 5: 12}[j])
        XB, X = V_OOP + 48, V_OOP + 64 + (j % 4) * 4
        for st in range(4):
            d = V_D + st * 8
            for mt in range(2):
                A.i('v_mfma_f32_16x16x32_bf16 %s, %s, %s, 0' % (vr(d + 4 * mt, 4), ar(b + 16 + 4 * mt, 4), ar(b + st * 4, 4)))
            for i in range(4):
                A.i('v_cndmask_b32 v%d, 0, v%d, s[%d:%d]' % (XB + 4 * st + i, X + i, 8 + 2 * st, 9 + 2 * st))
        for st in range(4):
            d = V_D + st * 8
            for mt in range(2):
                A.i('v_mfma_f32_16x16x32_bf16 %s, %s, %s, %s' % (vr(d + 4 * mt, 4), ar(b + 24 + 4 * mt, 4),
                                                               vr(XB + 4 * st, 4), vr(d + 4 * mt, 4)))
        if j + 4 < 8:
            L_Opq(j + 4); L_Okv(j + 4)
        if j < 4:
            L_W(j + 1)
        if j == 0:
            for st in range(4):
                A.i('v_sub_f32 v%d, 1.0, v%d' % (V_T + 2 * st, V_GT + st))
            for st in range(4):
                for k in range(0, 20, 2):
                    A.i('v_pk_mul_f32 %s, %s, %s op_sel_hi:[1,0]' % (vr(acc(st, 0) + k, 2), vr(acc(st, 0) + k, 2), vr(V_T + 2 * st, 2)))
        VL = []
        for st in range(4):
            d = V_D + st * 8
            VL.append('v_add_f32 v%d, 0x%08x, v%d' % (d + 6, f32bits(1e-6), d + 5))
        for st in range(4):
            d = V_D + st * 8
            VL.append('v_rcp_f32 v%d, v%d' % (d + 6, d + 6))
        for st in range(4):
            d = V_D + st * 8
            VL.append('v_mul_f32 v%d, v%d, v%d' % (d + 6, d + 6, V_GT + st))
        for st in range(4):
            d = V_D + st * 8
            for h in range(2):
                VL.append('v_pk_mul_f32 %s, %s, %s op_sel_hi:[1,0]' % (vr(d + 2 * h, 2), vr(d + 2 * h, 2), vr(d + 6, 2)))
            VL.append('v_mul_f32 v%d, v%d, v%d' % (V_SV + st if j % 2 == 0 else d + 4, d + 4, d + 6))
        for st in range(4):
            d = V_D + st * 8
            o_ = OP + ((p % 2) * 4 + st) * 4 + 2 * (j % 2)
            VL.append('v_cvt_pk_bf16_f32 v%d, v%d, v%d' % (o_, d, d + 1))
            VL.append('v_cvt_pk_bf16_f32 v%d, v%d, v%d' % (o_ + 1, d + 2, d + 3))
            if j % 2 == 1:
                VL.append('v_cvt_pk_bf16_f32 v%d, v%d, v%d' % (O4 + st * 4 + p, V_SV + st, d + 4))
        ML = []
        if p >= 1:
            pp = p - 1
            if j % 2 == 0:
                A.wait_vm(('wo', pp))
            allm = ['v_mfma_f32_16x16x32_bf16 %s, %s, %s, %s' % (vr(acc(st, t), 4), ar(wslot(pp) + 4 * t, 4),
                                                               vr(OP + ((pp % 2) * 4 + st) * 4, 4), vr(acc(st, t), 4))
                    for t in range(5) for st in range(4)]
            ML = allm[:10] if j % 2 == 0 else allm[10:]
        for m in ML[:3]:
            A.i(m)
        ML = ML[3:]
        for k, ins in enumerate(VL):
            A.i(ins)
            if ML and k % 4 == 3:
                A.i(ML.pop(0))
        for m in ML:
            A.i(m)
    A.wait_vm(('wo', 3))
    C_G(wslot(3), lambda st: vr(OP + (4 + st) * 4, 4), False)
    A.stamp(5)
    A.wait_vm(('wo', 4))
    C_G(wslot(4), lambda st: vr(O4 + st * 4, 4), False)
    A.stamp(6)

    VW, VRD, VO, VO2 = V_A, V_A + 1, V_A + 2, V_A + 3
    A.i('s_mul_i32 s%d, s%d, 15360' % (S_T0, S_W))
    A.i('v_add_u32 v%d, s%d, v%d' % (VRD, S_T0, V_L16))
    A.i('s_lshl_b32 s%d, s%d, 4' % (S_T0, S_W))
    A.i('s_lshl_b32 s%d, s%d, 6' % (S_T1, S_RB))
    A.i('s_add_u32 s%d, s%d, s%d' % (S_T1, S_T1, S_T0))
    A.i('v_add_u32 v%d, s%d, v%d' % (t0, S_T1, V_L))
    A.i('v_mul_u32_u24 v%d, 1280, v%d' % (t0, t0))
    A.i('s_mul_i32 s%d, s%d, 160' % (S_T2, S_CB))
    A.i('v_add_u32 v%d, s%d, v%d' % (t0, S_T2, t0))
    A.i('v_lshl_add_u32 v%d, v%d, 4, v%d' % (VO, V_G, t0))
    A.i('v_lshl_add_u32 v%d, v%d, 3, v%d' % (VO2, V_G, t0))
    A.fence()
    for w in range(1, 4):
        A.i('s_cmp_eq_u32 s%d, %d' % (S_W, w))
        A.i('s_cbranch_scc1 L_k2_red%d' % w)
    R0 = V_OOP
    for w in range(4):
        if w:
            A.raw('L_k2_red%d:' % w)
        A.hist = []; A.lgq = []
        for d in range(1, 4):
            dst = (w + d) & 3
            slot = (w - dst - 1) & 3
            for t in range(5):
                A.i('ds_write_b128 v%d, %s offset:%d' % (V_L16, vr(acc(dst, t), 4), (dst * 15 + slot * 5 + t) * 1024), tag='rw')
        A.wait_all(vm=False)
        A.i('s_barrier')
        for k in range(15):
            A.i('ds_read_b128 %s, v%d offset:%d' % (vr(R0 + 4 * k, 4), VRD, 1024 * k), tag=('rr', k))
        a = acc(w, 0)
        for sl in range(3):
            for t in range(5):
                A.wait_lg(('rr', sl * 5 + t))
                for h in range(2):
                    A.i('v_pk_add_f32 %s, %s, %s' % (vr(a + 4 * t + 2 * h, 2), vr(a + 4 * t + 2 * h, 2),
                                                    vr(R0 + (sl * 5 + t) * 4 + 2 * h, 2)))
        for k in range(10):
            A.i('v_cvt_pk_bf16_f32 v%d, v%d, v%d' % (V_D + k, a + 2 * k, a + 2 * k + 1))
        A.i('buffer_store_dwordx4 %s, v%d, s[%d:%d], 0 offen' % (vr(V_D, 4), VO, S_OUT, S_OUT + 3), tag='st')
        A.i('buffer_store_dwordx4 %s, v%d, s[%d:%d], 0 offen offset:64' % (vr(V_D + 4, 4), VO, S_OUT, S_OUT + 3), tag='st')
        A.i('buffer_store_dwordx2 %s, v%d, s[%d:%d], 0 offen offset:128' % (vr(V_D + 8, 2), VO2, S_OUT, S_OUT + 3), tag='st')
        if w < 3:
            A.i('s_branch L_k2_fin')
    A.raw('L_k2_fin:')
    A.hist = []
    A.stamp(7)
    A.stamp_end(38, 39, WS_STAMP + 0x80000, S_W, 4)
    if os.environ.get('DBG2'):
        A.wait_all()
        A.i('s_add_u32 s92, s38, 0x%x' % (WS_STAMP + (int(os.environ['DBG2']) * 8 + 7) * 256))
        A.i('s_addc_u32 s93, s39, 0')
        A.i('s_and_b32 s93, s93, 0xffff')
        A.i('s_mov_b32 s94, 64')
        A.i('s_mov_b32 s95, 0x20000')
        A.i('v_lshlrev_b32 v1, 2, v0')
        A.i('buffer_load_dword v2, v1, s[92:95], 0 offen')
        A.i('s_memrealtime s[96:97]')
        A.i('s_waitcnt vmcnt(0) lgkmcnt(0)')
        A.i('v_writelane_b32 v2, s100, 5')
        A.i('v_writelane_b32 v2, s96, 15')
        A.i('s_mov_b32 s92, s36')
        A.i('s_and_b32 s93, s37, 0xffff')
        A.i('s_or_b32 s96, s2, s%d' % S_W)
        A.i('s_cmp_eq_u32 s96, 0')
        A.i('s_cselect_b32 s96, 0, 0x1000')
        A.i('buffer_store_dword v2, v1, s[92:95], s96 offen')
    A.raw('L_k2_exit:')
    A.i('s_endpgm')
```
